```python
import torch

def _softmax(x, axis=-1):
    return torch.softmax(x, dim=axis)
def _gelu(x):
    return torch.nn.functional.gelu(x, approximate="tanh")
def _silu(x):
    return torch.nn.functional.silu(x)
def _sigmoid(x):
    return torch.sigmoid(x)
def _layernorm(x, axis=-1, eps=1e-5):
    m = x.mean(dim=axis, keepdim=True)
    v = x.var(dim=axis, keepdim=True, unbiased=False)
    return (x - m) / torch.sqrt(v + eps)
def _scatter_add(tgt, idx, src, axis=0):
    return tgt.clone().index_add_(axis, idx, src)
def _segment_sum(src, seg, n):
    out = torch.zeros((n,) + src.shape[1:], dtype=src.dtype)
    return out.index_add_(0, seg, src)
def _pad(x, pw):
    flat = tuple(v for pair in reversed(pw) for v in pair)
    return torch.nn.functional.pad(x, flat)

kernel_name = 'concat_heads__gqa_block_cached__gqa_block_cached__near_ridge'

def setup_inputs():

    _w = (lambda a: (lambda t: t.to(torch.bfloat16) if t.is_floating_point() else t)(torch.as_tensor(a)))
    def _A_setup():
        B, Sq, D = 8, 64, 448
        Hq, Hkv, Sk, Dh = 16, 8, 512, 256
        assert Hq % Hkv == 0, (Hq, Hkv)
        return {
            "x": _w((lambda *s: torch.randn(*s, dtype=torch.bfloat16) * 0.8)(B, Sq, D)),
            "k_cache": _w((lambda *s: torch.randn(*s, dtype=torch.bfloat16) * 0.8)(B, Hkv, Sk, Dh)),
            "v_cache": _w((lambda *s: torch.randn(*s, dtype=torch.bfloat16) * 0.05)(B, Hkv, Sk, Dh)),
            "wq": _w((lambda *s: torch.randn(*s, dtype=torch.bfloat16) * 0.8)(D, Hq * Dh) * (D ** -0.5)),
            "wo": _w((lambda *s: torch.randn(*s, dtype=torch.bfloat16) * 0.05)(Hq * Dh, D) * ((Hq * Dh) ** -0.5)),
        }
    _A_in = _A_setup()

    def _B_setup():
        B, Sq, D = 8, 64, 448
        Hq, Hkv, Sk, Dh = 16, 8, 512, 256
        assert Hq % Hkv == 0, (Hq, Hkv)
        return {
            "x": _w((lambda *s: torch.randn(*s, dtype=torch.bfloat16) * 0.8)(B, Sq, D)),
            "k_cache": _w((lambda *s: torch.randn(*s, dtype=torch.bfloat16) * 0.8)(B, Hkv, Sk, Dh)),
            "v_cache": _w((lambda *s: torch.randn(*s, dtype=torch.bfloat16) * 0.05)(B, Hkv, Sk, Dh)),
            "wq": _w((lambda *s: torch.randn(*s, dtype=torch.bfloat16) * 0.8)(D, Hq * Dh) * (D ** -0.5)),
            "wo": _w((lambda *s: torch.randn(*s, dtype=torch.bfloat16) * 0.05)(Hq * Dh, D) * ((Hq * Dh) ** -0.5)),
        }
    _B_in = _B_setup()

    return {
        "A_x": _A_in["x"],
        "A_k_cache": _A_in["k_cache"],
        "A_v_cache": _A_in["v_cache"],
        "A_wq": _A_in["wq"],
        "A_wo": _A_in["wo"],
        "B_x": _B_in["x"],
        "B_k_cache": _B_in["k_cache"],
        "B_v_cache": _B_in["v_cache"],
        "B_wq": _B_in["wq"],
        "B_wo": _B_in["wo"],
    }

def reference(A_x, A_k_cache, A_v_cache, A_wq, A_wo, B_x, B_k_cache, B_v_cache, B_wq, B_wo):
    def _A_ref(x, k_cache, v_cache, wq, wo):
        B, Sq, D = x.shape
        Hq, Dh = 16, 256
        Hkv = k_cache.shape[1]
        rep = Hq // Hkv
        q = (lambda x, *d: x.permute(*d))((x @ wq).reshape(B, Sq, Hq, Dh), 0, 2, 1, 3)
        k = (lambda x, n, axis: torch.repeat_interleave(x, n, dim=axis))(k_cache, rep, axis=1)
        v = (lambda x, n, axis: torch.repeat_interleave(x, n, dim=axis))(v_cache, rep, axis=1)
        scores = torch.einsum("bhqd,bhkd->bhqk", q, k) * (Dh ** -0.5)
        p = _softmax(scores, axis=-1)
        o = torch.einsum("bhqk,bhkd->bhqd", p, v)
        return (lambda x, *d: x.permute(*d))(o, 0, 2, 1, 3).reshape(B, Sq, Hq * Dh) @ wo

    def _B_ref(x, k_cache, v_cache, wq, wo):
        B, Sq, D = x.shape
        Hq, Dh = 16, 256
        Hkv = k_cache.shape[1]
        rep = Hq // Hkv
        q = (lambda x, *d: x.permute(*d))((x @ wq).reshape(B, Sq, Hq, Dh), 0, 2, 1, 3)
        k = (lambda x, n, axis: torch.repeat_interleave(x, n, dim=axis))(k_cache, rep, axis=1)
        v = (lambda x, n, axis: torch.repeat_interleave(x, n, dim=axis))(v_cache, rep, axis=1)
        scores = torch.einsum("bhqd,bhkd->bhqk", q, k) * (Dh ** -0.5)
        p = _softmax(scores, axis=-1)
        o = torch.einsum("bhqk,bhkd->bhqd", p, v)
        return (lambda x, *d: x.permute(*d))(o, 0, 2, 1, 3).reshape(B, Sq, Hq * Dh) @ wo

    a = _A_ref(A_x, A_k_cache, A_v_cache, A_wq, A_wo)
    b = _B_ref(B_x, B_k_cache, B_v_cache, B_wq, B_wo)
    return torch.concatenate([a, b], axis=-1)
```

```python
import re

_REG = re.compile(r'^(-|abs\()?([vas])(\d+)\)?$')
_RNG = re.compile(r'^(-|abs\()?([vas])\[(\d+):(\d+)\]\)?$')


def regs_of(op):
    op = op.strip()
    m = _REG.match(op)
    if m:
        return [m.group(2) + m.group(3)]
    m = _RNG.match(op)
    if m:
        return [m.group(2) + str(i) for i in range(int(m.group(3)), int(m.group(4)) + 1)]
    if op in ('m0', 'vcc', 'exec', 'scc'):
        return [op]
    if op in ('vcc_lo', 'vcc_hi'):
        return ['vcc']
    return []


def R(kind, i, n=1):
    return f"{kind}{i}" if n == 1 else f"{kind}[{i}:{i + n - 1}]"


def V(i, n=1): return R('v', i, n)
def A(i, n=1): return R('a', i, n)
def S(i, n=1): return R('s', i, n)


TRANS = ('v_exp_f32', 'v_log_f32', 'v_rcp_f32', 'v_rsq_f32', 'v_sqrt_f32', 'v_sin_f32', 'v_cos_f32')


class Ins:
    def __init__(self, text):
        self.text = text
        t = text.split(';')[0].strip()
        self.label = t.endswith(':')
        parts = t.split(None, 1)
        self.op = parts[0] if parts else ''
        rest = parts[1] if len(parts) > 1 else ''
        rest = re.split(r'\s+(?:op_sel|neg_lo|neg_hi)', rest)[0]
        ops = [o.strip() for o in rest.split(',')] if rest else []
        mods = []
        if ops:
            sp = ops[-1].split()
            ops[-1] = sp[0] if sp else ''
            mods = sp[1:]
        self.ops = ops
        self.mods = mods
        op = self.op
        self.wr, self.rd = set(), set()
        self.srcc = set()
        self.passes = 0
        self.kind = 'other'
        allr = [regs_of(o) for o in ops]
        if self.label or not op:
            self.kind = 'label'
        elif op.startswith('v_mfma'):
            self.kind = 'mfma'
            self.passes = 8 if '32x32x16' in op else 4
            self.wr = set(allr[0])
            self.rd = set(allr[1]) | set(allr[2]) | set(allr[3])
            self.srcab = set(allr[1]) | set(allr[2])
            self.srcc = set(allr[3])
        elif op.startswith('v_'):
            self.kind = 'trans' if op.split('_e32')[0].split('_e64')[0] in TRANS else 'valu'
            if op.startswith('v_permlane'):
                self.wr = set(allr[0]) | set(allr[1])
                self.rd = set(self.wr)
            elif op.startswith('v_cmp'):
                self.wr = set(allr[0])
                for r in allr[1:]:
                    self.rd |= set(r)
            else:
                self.wr = set(allr[0])
                for r in allr[1:]:
                    self.rd |= set(r)
                if op.startswith('v_fmac') or op.startswith('v_pk_fmac'):
                    self.rd |= self.wr
        elif op.startswith('ds_read'):
            self.kind = 'ds'
            self.wr = set(allr[0])
            self.rd = set(allr[1])
        elif op.startswith('ds_write'):
            self.kind = 'ds'
            for r in allr:
                self.rd |= set(r)
        elif op.startswith('buffer_load') or op.startswith('global_load'):
            self.kind = 'vmem'
            if 'lds' in mods:
                for r in allr:
                    self.rd |= set(r)
                self.rd.add('m0')
                self.kind = 'dma'
            else:
                self.wr = set(allr[0])
                for r in allr[1:]:
                    self.rd |= set(r)
        elif op.startswith('buffer_store') or op.startswith('global_store'):
            self.kind = 'vmem'
            for r in allr:
                self.rd |= set(r)
            self.store_data = set(allr[0]) if op.startswith('buffer_store') else set(allr[1])
            self.wide = op.endswith('x4') or op.endswith('x3')
        elif op.startswith('s_'):
            self.kind = 'salu'
            if op in ('s_waitcnt', 's_barrier', 's_nop', 's_endpgm', 's_setprio', 's_branch', 's_sleep') or op.startswith('s_cbranch'):
                self.kind = 'ctl'
            elif op.startswith('s_cmp'):
                for r in allr:
                    self.rd |= set(r)
                self.wr = {'scc'}
            elif op.startswith('s_load') or op.startswith('s_memtime') or op.startswith('s_memrealtime'):
                self.kind = 'smem'
                self.wr = set(allr[0])
                for r in allr[1:]:
                    self.rd |= set(r)
            else:
                self.wr = set(allr[0])
                for r in allr[1:]:
                    self.rd |= set(r)

    def states(self):
        if self.kind == 'label':
            return 0
        if self.op == 's_nop':
            return int(self.ops[0], 0) + 1
        return 1


def required_gap(p, c):
    need = 0
    isvalu_p = p.kind in ('valu', 'trans')
    isvalu_c = c.kind in ('valu', 'trans')
    pv = {r for r in p.wr if r[0] in 'va' and r[1:].isdigit()}
    ps = {r for r in p.wr if (r[0] == 's' and r[1:].isdigit()) or r == 'vcc'}
    if isvalu_p:
        if c.kind == 'mfma' and pv & c.rd:
            need = max(need, 2)
        if c.op.startswith('v_permlane') and pv & c.rd:
            need = max(need, 2)
        if (c.op.startswith('v_readfirstlane') or c.op.startswith('v_readlane')) and pv & c.rd:
            need = max(need, 1)
        if p.kind == 'trans' and (pv & (c.rd | c.wr)) and c.kind != 'trans':
            need = max(need, 1)
        if p.kind == 'trans' and (pv & c.rd):
            need = max(need, 1)
        if ps:
            if isvalu_c and ps & c.rd:
                need = max(need, 2)
            if c.kind in ('vmem', 'dma') and ps & c.rd:
                need = max(need, 5)
            if c.kind in ('salu', 'smem') and ps & c.rd:
                need = max(need, 2)
            if c.op.startswith('v_readlane') or c.op.startswith('v_writelane'):
                if ps & c.rd:
                    need = max(need, 4)
    if p.kind == 'mfma':
        tbl_ab = {4: 8, 8: 12}
        tbl_c = {4: 6, 8: 10}
        tbl_war = {4: 3, 8: 7}
        if c.kind == 'mfma':
            if p.wr & c.srcab:
                need = max(need, tbl_ab[p.passes])
            if p.wr & c.srcc:
                if not (p.wr == c.srcc and p.passes == c.passes):
                    need = max(need, tbl_c[p.passes])
            elif p.wr & c.wr:
                need = max(need, tbl_ab[p.passes])
        elif c.kind in ('valu', 'trans', 'ds', 'vmem', 'dma'):
            if p.wr & (c.rd | c.wr):
                need = max(need, tbl_ab[p.passes])
            if isvalu_c and (p.srcc & c.wr):
                need = max(need, tbl_war[p.passes])
    if p.kind == 'salu' and 'm0' in p.wr and c.kind == 'dma':
        need = max(need, 1)
    if p.kind == 'vmem' and getattr(p, 'wide', False):
        if p.store_data & c.wr:
            need = max(need, 2)
    return need


class Gen:
    def __init__(self):
        self.ins = []
        self.lg = []
        self.vm = []

    def raw(self, text):
        self.ins.append(Ins(text))

    def comment(self, text):
        self.ins.append(Ins('; ' + text))

    def _lg_wait_idx(self, idx):
        n = len(self.lg) - 1 - idx
        n = min(n, 15)
        self.raw(f"s_waitcnt lgkmcnt({n})")
        self.lg = self.lg[len(self.lg) - n:] if n else []

    def _vm_wait_idx(self, idx):
        n = len(self.vm) - 1 - idx
        n = min(n, 63)
        self.raw(f"s_waitcnt vmcnt({n})")
        self.vm = self.vm[len(self.vm) - n:] if n else []

    def emit(self, text, tag=None):
        i = Ins(text)
        touched = i.rd | i.wr
        idx = -1
        for k, (dst, _) in enumerate(self.lg):
            if dst & touched:
                idx = k
        if idx >= 0:
            self._lg_wait_idx(idx)
        idx = -1
        for k, (dst, _) in enumerate(self.vm):
            if dst & touched:
                idx = k
        if idx >= 0:
            self._vm_wait_idx(idx)
        if i.kind == 'ds':
            if len(self.lg) >= 15:
                self._lg_wait_idx(len(self.lg) - 15)
            self.lg.append((set(i.wr), tag))
        elif i.kind in ('vmem', 'dma'):
            if len(self.vm) >= 62:
                self._vm_wait_idx(len(self.vm) - 62)
            self.vm.append((set(i.wr), tag))
        self.ins.append(i)

    def wait_ds(self, tag=None):
        idx = -1
        for k, (_, t) in enumerate(self.lg):
            if tag is None or t == tag or (isinstance(t, list) and tag in t):
                idx = k
        if idx >= 0:
            self._lg_wait_idx(idx)

    def wait_vm(self, tag=None):
        idx = -1
        for k, (_, t) in enumerate(self.vm):
            if tag is None or t == tag or (isinstance(t, list) and tag in t):
                idx = k
        if idx >= 0:
            self._vm_wait_idx(idx)

    def barrier(self):
        self.wait_ds()
        self.raw("s_barrier")

    def finish(self):
        out = []
        for c in self.ins:
            if c.kind not in ('label',) and c.op and not c.op.startswith(';'):
                dist = 0
                need_pad = 0
                for p in reversed(out):
                    if dist >= 20:
                        break
                    g = required_gap(p, c)
                    if g > dist:
                        need_pad = max(need_pad, g - dist)
                    dist += p.states()
                while need_pad > 0:
                    k = min(need_pad, 16)
                    out.append(Ins(f"s_nop {k - 1}"))
                    need_pad -= k
            out.append(c)
        lines = []
        for i in out:
            if i.kind == 'label' and i.text.strip().endswith(':'):
                lines.append(i.text)
            else:
                lines.append("    " + i.text)
        return "\n".join(lines) + "\n"
```

```python
import sys, math, argparse
from asmgen import Gen, V, A, S

NAME = "concat_heads__gqa_block_cached__gqa_block_cached__near_ridge"
HEADER = open("cdna_kernels/" + NAME + ".s.ref").read().split("; Override launch")[0]

ap = argparse.ArgumentParser()
ap.add_argument("-o", default="k.s")
ap.add_argument("--part", default="bf16", choices=["bf16", "f32"])
ap.add_argument("--dump", default="", help="debug: dump stage (q|p|o) frags of X region to ws+64MB")
ap.add_argument("--stamps", action="store_true")
ap.add_argument("--nok2", action="store_true")
ap.add_argument("--kvnt", action="store_true")
ap.add_argument("--stsc", default="", help="cache flags for partial stores e.g. 'sc1' or 'nt'")
ap.add_argument("--nopf", action="store_true")
args = ap.parse_args()

PART_F32 = args.part == "f32"
PART_BYTES = 64 * 448 * (4 if PART_F32 else 2)

X_BASE = 0
STATS = 57344
SUMS = 32768
RING0 = 65536
NSLOT = 6
RING_W = NSLOT * 4096
LDS_BYTES = RING0 + 4 * RING_W
assert LDS_BYTES <= 163840

sW, sRING, sOFF, sC = 4, 5, 6, 7
SRD_X, SRD_WQ, SRD_K, SRD_V, SRD_WO, SRD_P = 8, 12, 16, 20, 24, 28
sB, sH, sBR, sKV = 32, 33, 34, 35
sPTR = 36
sPC = 62
sT0, sT1, sT2, sT3 = 64, 65, 66, 67
sST = 68
SRD_D = 72
sTM = 76

vL = 1
vXD = 2
vWD = 4
vKD = 8
vVD = 12
vOD = 16
vRBx = 20
vRBk = 24
vTRw = 28
vTRv = 30
vTRo = 32
vLin = 39
vQW = 40
vPW = 41
vOW = 42
vSTw = 43
vSTr = 44
vSMw = 45
vSMr = 46
vOut = 47
vT = 48
ABUF = 64
ACC = 128
BBUF = 128
QREG = 0

g = Gen()
E = g.emit

stamp_n = [0]
def stamp():
    if not args.stamps:
        return
    k = stamp_n[0]; stamp_n[0] += 1
    assert sTM + 2 * k + 1 < 102
    g.raw(f"s_memtime {S(sTM + 2 * k, 2)}")
    g.raw("s_waitcnt lgkmcnt(0)")
    g.lg = []


def prologue():
    g.raw("s_cmp_ge_u32 s2, 256")
    g.raw("s_cbranch_scc1 K1_END")
    g.raw(f"s_load_dwordx16 {S(sPTR, 16)}, s[0:1], 0")
    g.raw(f"s_load_dwordx8 {S(sPTR + 16, 8)}, s[0:1], 64")
    g.raw(f"s_load_dwordx2 {S(sPTR + 24, 2)}, s[0:1], 96")
    if not args.nopf:
        E(f"s_getpc_b64 {S(sPC, 2)}")
        g.raw("K1_PC:")
        E(f"v_lshlrev_b32 {V(vT)}, 7, v0")
        E(f"v_min_u32 {V(vT + 4)}, CODE_END-K1_PC-4, {V(vT)}")
        E(f"global_load_dword {V(vT + 1)}, {V(vT + 4)}, {S(sPC, 2)}", tag="pf")
        E(f"v_add_u32 {V(vT)}, 0x8000, {V(vT)}")
        E(f"v_min_u32 {V(vT + 4)}, CODE_END-K1_PC-4, {V(vT)}")
        E(f"global_load_dword {V(vT + 2)}, {V(vT + 4)}, {S(sPC, 2)}", tag="pf")
    E(f"v_and_b32 {V(vL)}, 63, v0")
    E(f"v_lshrrev_b32 {V(vT + 3)}, 6, v0")
    E(f"v_readfirstlane_b32 {S(sW)}, {V(vT + 3)}")
    E(f"s_and_b32 {S(sT0)}, s2, 7")
    E(f"s_lshr_b32 {S(sT1)}, s2, 3")
    E(f"s_lshr_b32 {S(sT2)}, {S(sT1)}, 4")
    E(f"s_lshl_b32 {S(sT0)}, {S(sT0)}, 1")
    E(f"s_add_u32 {S(sT0)}, {S(sT0)}, {S(sT2)}")
    E(f"s_lshr_b32 {S(sBR)}, {S(sT0)}, 3")
    E(f"s_and_b32 {S(sKV)}, {S(sT0)}, 7")
    E(f"s_lshr_b32 {S(sB)}, {S(sT1)}, 1")
    E(f"s_and_b32 {S(sB)}, {S(sB)}, 7")
    E(f"s_and_b32 {S(sT2)}, {S(sT1)}, 1")
    E(f"s_lshl_b32 {S(sH)}, {S(sKV)}, 1")
    E(f"s_add_u32 {S(sH)}, {S(sH)}, {S(sT2)}")
    E(f"s_mul_i32 {S(sRING)}, {S(sW)}, {RING_W}")
    E(f"s_add_u32 {S(sRING)}, {S(sRING)}, {RING0}")
    E(f"s_mov_b32 {S(sC)}, 0x{f32bits(math.log2(math.e) / 16.0):08x}")
    lane_consts()
    g.raw("s_waitcnt lgkmcnt(0)")
    E(f"s_cmp_eq_u32 {S(sBR)}, 0")
    for i in range(0, 10, 2):
        E(f"s_cselect_b64 {S(sPTR + i, 2)}, {S(sPTR + i, 2)}, {S(sPTR + 10 + i, 2)}")
    def srd(base, ptr, off_sreg, nrec):
        E(f"s_add_u32 {S(base)}, {S(ptr)}, {S(off_sreg)}")
        E(f"s_addc_u32 {S(base + 1)}, {S(ptr + 1)}, 0")
        E(f"s_and_b32 {S(base + 1)}, {S(base + 1)}, 0xffff")
        if isinstance(nrec, int):
            E(f"s_mov_b32 {S(base + 2)}, {nrec}")
        else:
            E(f"s_sub_u32 {S(base + 2)}, {nrec[0]}, {S(nrec[1])}")
        E(f"s_mov_b32 {S(base + 3)}, 0x00020000")
    E(f"s_mul_i32 {S(sT0)}, {S(sB)}, 57344")
    srd(SRD_X, sPTR + 0, sT0, 57344)
    E(f"s_lshl_b32 {S(sT0)}, {S(sH)}, 9")
    srd(SRD_WQ, sPTR + 6, sT0, (448 * 8192, sT0))
    E(f"s_lshl_b32 {S(sT0)}, {S(sB)}, 3")
    E(f"s_add_u32 {S(sT0)}, {S(sT0)}, {S(sKV)}")
    E(f"s_lshl_b32 {S(sT0)}, {S(sT0)}, 18")
    srd(SRD_K, sPTR + 2, sT0, 262144)
    srd(SRD_V, sPTR + 4, sT0, 262144)
    E(f"s_mul_i32 {S(sT0)}, {S(sH)}, 229376")
    srd(SRD_WO, sPTR + 8, sT0, 229376)
    E(f"s_lshl_b32 {S(sT0)}, {S(sBR)}, 3")
    E(f"s_add_u32 {S(sT0)}, {S(sT0)}, {S(sB)}")
    E(f"s_lshl_b32 {S(sT0)}, {S(sT0)}, 4")
    E(f"s_add_u32 {S(sT0)}, {S(sT0)}, {S(sH)}")
    E(f"s_mul_i32 {S(sT1)}, {S(sT0)}, {PART_BYTES}")
    srd(SRD_P, sPTR + 24, sT1, PART_BYTES)
    if args.dump or args.stamps:
        E(f"s_lshl_b32 {S(sT1)}, {S(sT0)}, 16")
        E(f"s_add_u32 {S(sT1)}, {S(sT1)}, {64 << 20}")
        srd(SRD_D, sPTR + 24, sT1, 65536)
    rowb = 448 * (4 if PART_F32 else 2)
    for u in range(4):
        E(f"s_mov_b32 {S(sST + u)}, {u * 16 * rowb}")


def f32bits(x):
    import struct
    return struct.unpack("<I", struct.pack("<f", x))[0]


def lane_consts():
    t = [vT + 4 + i for i in range(10)]
    l = V(vL)
    l3, l7, l4, l35 = t[0], t[1], t[2], t[3]
    E(f"v_lshrrev_b32 {V(l3)}, 3, {l}")
    E(f"v_and_b32 {V(l7)}, 7, {l}")
    E(f"v_lshrrev_b32 {V(l4)}, 4, {l}")
    E(f"s_lshl_b32 {S(sT3)}, {S(sW)}, 7")
    E(f"s_mul_i32 {S(sT0)}, {S(sW)}, {16 * 896}")
    E(f"v_mul_u32_u24 {V(t[4])}, 896, {V(l3)}")
    E(f"v_add_u32 {V(t[4])}, {S(sT0)}, {V(t[4])}")
    E(f"v_xor_b32 {V(t[5])}, {V(l7)}, {V(l4)}")
    E(f"v_lshl_add_u32 {V(vXD)}, {V(t[5])}, 4, {V(t[4])}")
    E(f"v_xor_b32 {V(t[6])}, 4, {V(t[5])}")
    E(f"v_lshl_add_u32 {V(vXD + 1)}, {V(t[6])}, 4, {V(t[4])}")
    E(f"v_add_u32 {V(vXD + 1)}, {8 * 896}, {V(vXD + 1)}")
    E(f"s_lshl_b32 {S(sT0)}, {S(sW)}, 16")
    E(f"v_lshl_add_u32 {V(t[4])}, {V(l3)}, 9, {S(sT0)}")
    for j in range(4):
        E(f"v_lshl_add_u32 {V(vKD + j)}, {V(t[5] if j % 2 == 0 else t[6])}, 4, {V(t[4])}")
        if j:
            E(f"v_add_u32 {V(vKD + j)}, {j * 3072}, {V(vKD + j)}")
    E(f"v_and_b32 {V(t[7])}, 1, {V(l4)}")
    E(f"v_lshlrev_b32 {V(t[7])}, 2, {V(t[7])}")
    E(f"v_xor_b32 {V(t[7])}, {V(l7)}, {V(t[7])}")
    E(f"v_lshl_add_u32 {V(t[7])}, {V(t[7])}, 4, {S(sT3)}")
    E(f"v_lshl_add_u32 {V(vWD)}, {V(l3)}, 13, {V(t[7])}")
    E(f"v_lshl_add_u32 {V(vVD)}, {V(l3)}, 9, {V(t[7])}")
    for j in range(1, 4):
        E(f"v_add_u32 {V(vWD + j)}, {j * (65536 - 1024)}, {V(vWD)}")
        E(f"v_add_u32 {V(vVD + j)}, {j * 3072}, {V(vVD)}")
    E(f"v_bfe_u32 {V(t[4])}, {l}, 1, 3")
    E(f"v_xor_b32 {V(t[4])}, {V(t[4])}, {V(l4)}")
    E(f"v_xor_b32 {V(t[5])}, 4, {V(t[4])}")
    E(f"v_min_u32 {V(t[4])}, 6, {V(t[4])}")
    E(f"v_min_u32 {V(t[5])}, 6, {V(t[5])}")
    E(f"v_and_b32 {V(t[6])}, 1, {l}")
    E(f"v_lshlrev_b32 {V(t[6])}, 4, {V(t[6])}")
    E(f"v_mul_u32_u24 {V(t[7])}, 896, {V(l4)}")
    E(f"s_mul_i32 {S(sT0)}, {S(sW)}, 224")
    E(f"v_add3_u32 {V(t[6])}, {V(t[6])}, {V(t[7])}, {S(sT0)}")
    for j in range(4):
        E(f"v_lshl_add_u32 {V(vOD + j)}, {V(t[4] if j < 2 else t[5])}, 5, {V(t[6])}")
        if j:
            E(f"v_add_u32 {V(vOD + j)}, {j * (3584 - 1024)}, {V(vOD + j)}")
    n, hf = t[4], t[5]
    E(f"v_and_b32 {V(n)}, 31, {l}")
    E(f"v_lshrrev_b32 {V(hf)}, 5, {l}")
    E(f"v_lshrrev_b32 {V(t[6])}, 3, {V(n)}")
    E(f"v_lshlrev_b32 {V(t[6])}, 10, {V(t[6])}")
    E(f"v_lshl_add_u32 {V(t[6])}, {V(l7)}, 7, {V(t[6])}")
    E(f"v_bfe_u32 {V(t[7])}, {V(n)}, 1, 3")
    E(f"v_xor_b32 {V(t[7])}, {V(t[7])}, {V(hf)}")
    for i in range(4):
        E(f"v_xor_b32 {V(t[8])}, {2 * i}, {V(t[7])}")
        E(f"v_lshl_add_u32 {V(vRBx + i)}, {V(t[8])}, 4, {V(t[6])}")
        E(f"v_add_u32 {V(vRBk + i)}, {S(sRING)}, {V(vRBx + i)}")
    r, c = t[6], t[7]
    E(f"v_bfe_u32 {V(r)}, {l}, 2, 2")
    E(f"v_and_b32 {V(c)}, 3, {l}")
    E(f"v_lshlrev_b32 {V(t[8])}, 7, {V(r)}")
    E(f"v_lshrrev_b32 {V(t[9])}, 1, {V(r)}")
    E(f"v_lshl_add_u32 {V(t[8])}, {V(t[9])}, 6, {V(t[8])}")
    E(f"v_and_b32 {V(t[9])}, 1, {V(l4)}")
    E(f"v_lshl_add_u32 {V(t[8])}, {V(t[9])}, 5, {V(t[8])}")
    E(f"v_and_b32 {V(t[9])}, 1, {V(c)}")
    E(f"v_lshl_add_u32 {V(t[8])}, {V(t[9])}, 4, {V(t[8])}")
    E(f"v_lshrrev_b32 {V(t[9])}, 1, {V(c)}")
    E(f"v_lshl_add_u32 {V(t[8])}, {V(t[9])}, 3, {V(t[8])}")
    E(f"v_add_u32 {V(t[8])}, {S(sRING)}, {V(t[8])}")
    E(f"v_lshl_add_u32 {V(vTRw)}, {V(hf)}, 10, {V(t[8])}")
    E(f"v_xor_b32 {V(vTRw + 1)}, 64, {V(vTRw)}")
    E(f"v_lshl_add_u32 {V(vTRv)}, {V(hf)}, 9, {V(t[8])}")
    E(f"v_xor_b32 {V(vTRv + 1)}, 64, {V(vTRv)}")
    E(f"v_lshlrev_b32 {V(t[8])}, 11, {V(l4)}")
    E(f"v_lshl_add_u32 {V(t[8])}, {V(r)}, 8, {V(t[8])}")
    E(f"v_lshl_add_u32 {V(t[8])}, {V(c)}, 3, {V(t[8])}")
    E(f"v_add_u32 {V(t[8])}, {S(sRING)}, {V(t[8])}")
    E(f"v_and_b32 {V(t[9])}, 1, {V(l4)}")
    E(f"v_lshl_or_b32 {V(t[9])}, {V(t[9])}, 2, {V(r)}")
    E(f"v_lshl_add_u32 {V(vTRo)}, {V(t[9])}, 5, {V(t[8])}")
    for m in range(1, 7):
        E(f"v_xor_b32 {V(vTRo + m)}, {m * 32}, {V(vTRo)}")
    E(f"v_lshlrev_b32 {V(vLin)}, 4, {l}")
    E(f"s_lshl_b32 {S(sT0)}, {S(sW)}, 13")
    E(f"v_add_u32 {V(vQW)}, {S(sT0)}, {V(vLin)}")
    E(f"s_lshl_b32 {S(sT1)}, {S(sW)}, 14")
    E(f"v_add_u32 {V(vPW)}, {S(sT1)}, {V(vLin)}")
    E(f"v_lshrrev_b32 {V(t[8])}, 4, {V(n)}")
    E(f"v_lshlrev_b32 {V(t[8])}, 10, {V(t[8])}")
    E(f"v_lshl_add_u32 {V(t[8])}, {V(hf)}, 8, {V(t[8])}")
    E(f"v_and_b32 {V(t[9])}, 15, {l}")
    E(f"v_lshl_add_u32 {V(t[8])}, {V(t[9])}, 4, {V(t[8])}")
    E(f"v_add_u32 {V(vOW)}, {S(sT0)}, {V(t[8])}")
    E(f"s_lshl_b32 {S(sT0)}, {S(sW)}, 2")
    E(f"v_add_u32 {V(vSTw)}, {S(sT0)}, {V(vLin)}")
    E(f"v_lshlrev_b32 {V(vSTr)}, 4, {V(n)}")
    E(f"v_lshlrev_b32 {V(vSMr)}, 4, {V(t[9])}")
    esz = 4 if PART_F32 else 2
    E(f"v_mul_u32_u24 {V(t[8])}, {448 * esz}, {V(t[9])}")
    E(f"v_lshl_add_u32 {V(t[8])}, {V(l4)}, {4 if PART_F32 else 3}, {V(t[8])}")
    E(f"s_mul_i32 {S(sT0)}, {S(sW)}, {112 * esz}")
    E(f"v_add_u32 {V(vOut)}, {S(sT0)}, {V(t[8])}")


NG_WQ, NG_K, NG_V, NG_WO = 14, 16, 16, 16
G_K = NG_WQ
G_V = G_K + NG_K
G_WO = G_V + NG_V
NG = G_WO + NG_WO


def dma_group(G):
    if G >= NG:
        return []
    slot = G % NSLOT
    if G < G_K:
        srd, vo, so, fl = SRD_WQ, vWD, G * 262144, ""
    elif G < G_V:
        i = G - G_K
        srd, vo, so, fl = SRD_K, vKD, (i // 4) * 16384 + (i % 4) * 128, (" nt" if args.kvnt else "")
    elif G < G_WO:
        srd, vo, so, fl = SRD_V, vVD, (G - G_V) * 16384, (" nt" if args.kvnt else "")
    else:
        srd, vo, so, fl = SRD_WO, vOD, (G - G_WO) * 14336, ""
    out = []
    def setup():
        if G >= NSLOT:
            g.wait_ds(("A", G - NSLOT))
        E(f"s_add_u32 m0, {S(sRING)}, {slot * 4096}")
        E(f"s_mov_b32 {S(sOFF)}, {so}")
    out.append(setup)
    for j in range(4):
        def f(j=j):
            off = f" offset:{j * 1024}" if j else ""
            E(f"buffer_load_dwordx4 {V(vo + j)}, {S(srd, 4)}, {S(sOFF)} offen{off}{fl} lds", tag=("G", G))
        out.append(f)
    return out


def dma_x():
    for par in range(2):
        for cg in range(7):
            E(f"s_lshl_b32 {S(sT0)}, {S(sW)}, 11")
            E(f"s_add_u32 m0, {S(sT0)}, {X_BASE + (cg * 8 + par) * 1024 - cg * 128}")
            off = f" offset:{cg * 128}" if cg else ""
            E(f"buffer_load_dwordx4 {V(vXD + par)}, {S(SRD_X, 4)}, 0 offen{off} lds", tag="X")


def abuf(G):
    return ABUF + (G % 2) * 28


def bbuf(G):
    return BBUF + (G % 2) * 16


def a_reads(G):
    out = []
    slot = G % NSLOT
    so = slot * 4096
    tag = ("A", G)
    if G < G_K or G_V <= G < G_WO:
        isw = G < G_K
        base = vTRw if isw else vTRv
        ab = abuf(G)
        first = True
        for ks in range(2):
            for mt in range(2):
                for r2 in range(2):
                    off = so + ks * 2048 + r2 * (512 if isw else 1024)
                    dst = ab + (ks * 2 + mt) * 4 + r2 * 2
                    def f(dst=dst, mt=mt, off=off, first=first):
                        if first:
                            g.wait_vm(("G", G))
                        E(f"ds_read_b64_tr_b16 {V(dst, 2)}, {V(base + mt)} offset:{off}", tag=tag)
                    out.append(f)
                    first = False
    elif G < G_V:
        ab = abuf(G)
        for i in range(4):
            def f(i=i):
                if i == 0:
                    g.wait_vm(("G", G))
                E(f"ds_read_b128 {V(ab + i * 4, 4)}, {V(vRBk + i)} offset:{so}", tag=tag)
            out.append(f)
    else:
        assert (G - G_WO) % 2 == 0 and slot % 2 == 0
        ab = abuf((G - G_WO) // 2)
        first = True
        for m in range(7):
            for r2 in range(2):
                def f(m=m, r2=r2, first=first):
                    if first:
                        g.wait_vm(("G", G + 1))
                    E(f"ds_read_b64_tr_b16 {V(ab + m * 4 + r2 * 2, 2)}, {V(vTRo + m)} offset:{so + r2 * 1024}",
                      tag=[("A", G), ("A", G + 1)])
                out.append(f)
                first = False
    return out


def interleave(mfmas, fillers, lead=1):
    n = len(mfmas)
    gaps = n - lead + 1 if n >= lead else 1
    per = [len(fillers) // gaps + (1 if k < len(fillers) % gaps else 0) for k in range(gaps)]
    fi = 0
    for k, m in enumerate(mfmas):
        E(m)
        if k + 1 >= lead:
            for _ in range(per[k + 1 - lead]):
                fillers[fi](); fi += 1
    while fi < len(fillers):
        fillers[fi](); fi += 1


def run(fs):
    for f in fs:
        f()


def dump_x(nbytes):
    g.barrier()
    E(f"v_lshlrev_b32 {V(vT)}, 4, v0")
    for k in range(nbytes // 4096):
        E(f"ds_read_b128 {V(vT + 4, 4)}, {V(vT)} offset:{k * 4096}")
        E(f"s_mov_b32 {S(sT0)}, {k * 4096}")
        E(f"buffer_store_dwordx4 {V(vT + 4, 4)}, {V(vT)}, {S(SRD_D, 4)}, {S(sT0)} offen", tag="dbg")
        g.wait_vm("dbg")
    g.barrier()


M32 = "v_mfma_f32_32x32x16_bf16"
M16 = "v_mfma_f32_16x16x32_bf16"


def k1():
    prologue()
    stamp()
    dma_x()
    for G in range(NSLOT):
        run(dma_group(G))
    g.wait_vm("X")
    g.raw("s_barrier")
    stamp()
    def xb_reads(G):
        out = []
        bb = bbuf(G)
        for ks2 in range(2):
            ks = 2 * G + ks2
            for nt in range(2):
                def f(ks=ks, nt=nt, ks2=ks2):
                    off = X_BASE + ((ks >> 2) * 8 + 4 * nt) * 1024
                    E(f"ds_read_b128 {A(bb + (ks2 * 2 + nt) * 4, 4)}, {V(vRBx + (ks & 3))} offset:{off}")
                out.append(f)
        return out
    run(xb_reads(0))
    run(a_reads(0))
    for G in range(NG_WQ):
        ab, bb = abuf(G), bbuf(G)
        mf = []
        for ks in range(2):
            for mt in range(2):
                for nt in range(2):
                    acc = V(ACC + (mt * 2 + nt) * 16, 16)
                    c = "0" if (G == 0 and ks == 0) else acc
                    mf.append(f"{M32} {acc}, {V(ab + (ks * 2 + mt) * 4, 4)}, {A(bb + (ks * 2 + nt) * 4, 4)}, {c}")
        fill = []
        if G + 1 < NG_WQ:
            fill += xb_reads(G + 1)
        fill += a_reads(G + 1)
        fill += dma_group(G + NSLOT)
        interleave(mf, fill)
    stamp()
    g.barrier()
    for mt in range(2):
        for nt in range(2):
            acc = ACC + (mt * 2 + nt) * 16
            for t in range(2):
                tmp = vT + ((mt * 4 + nt * 2 + t) % 4) * 4
                for k in range(4):
                    E(f"v_cvt_pk_bf16_f32 {V(tmp + k)}, {V(acc + 8 * t + 2 * k)}, {V(acc + 8 * t + 2 * k + 1)}")
                E(f"ds_write_b128 {V(vQW)}, {V(tmp, 4)} offset:{X_BASE + (2 * mt + t) * 2048 + nt * 1024}")
    g.barrier()
    if args.dump == "q":
        dump_x(32768)
    stamp()
    def q_reads(cg):
        out = []
        for i in range(4):
            ks = cg * 4 + i
            for nt in range(2):
                def f(ks=ks, nt=nt):
                    E(f"ds_read_b128 {A(QREG + (ks * 2 + nt) * 4, 4)}, {V(vLin)} offset:{X_BASE + (ks * 2 + nt) * 1024}")
                out.append(f)
        return out
    run(q_reads(0))
    for i in range(NG_K):
        G = G_K + i
        T, cg = i // 4, i % 4
        ab = abuf(G)
        mf = []
        for k4 in range(4):
            ks = cg * 4 + k4
            for nt in range(2):
                acc = V(ACC + (T * 2 + nt) * 16, 16)
                c = "0" if ks == 0 else acc
                mf.append(f"{M32} {acc}, {V(ab + k4 * 4, 4)}, {A(QREG + (ks * 2 + nt) * 4, 4)}, {c}")
        fill = []
        if T == 0 and cg < 3:
            fill += q_reads(cg + 1)
        fill += a_reads(G + 1)
        fill += dma_group(G + NSLOT)
        interleave(mf, fill)
    stamp()
    def Sreg(T, nt, r):
        return ACC + (T * 2 + nt) * 16 + r
    mx = [vT, vT + 1]
    for nt in range(2):
        vals = [Sreg(T, nt, r) for T in range(4) for r in range(16)]
        ch = [vT + 4 + nt * 4 + k for k in range(4)]
        for k in range(4):
            vs = vals[k * 16:(k + 1) * 16]
            E(f"v_max3_f32 {V(ch[k])}, {V(vs[0])}, {V(vs[1])}, {V(vs[2])}")
        for step in range(3, 15, 2):
            for k in range(4):
                vs = vals[k * 16:(k + 1) * 16]
                E(f"v_max3_f32 {V(ch[k])}, {V(ch[k])}, {V(vs[step])}, {V(vs[step + 1])}")
        for k in range(4):
            vs = vals[k * 16:(k + 1) * 16]
            E(f"v_max_f32 {V(ch[k])}, {V(ch[k])}, {V(vs[15])}")
        E(f"v_max3_f32 {V(mx[nt])}, {V(ch[0])}, {V(ch[1])}, {V(ch[2])}")
        E(f"v_max_f32 {V(mx[nt])}, {V(mx[nt])}, {V(ch[3])}")
    E(f"v_permlane32_swap_b32 {V(mx[0])}, {V(mx[1])}")
    E(f"v_max_f32 {V(mx[0])}, {V(mx[0])}, {V(mx[1])}")
    E(f"ds_write_b32 {V(vSTw)}, {V(mx[0])} offset:{STATS}")
    g.barrier()
    E(f"ds_read_b128 {V(vT + 4, 4)}, {V(vSTr)} offset:{STATS}")
    E(f"ds_read_b128 {V(vT + 8, 4)}, {V(vSTr)} offset:{STATS + 512}")
    for nt in range(2):
        b = vT + 4 + nt * 4
        E(f"v_max3_f32 {V(mx[nt])}, {V(b)}, {V(b + 1)}, {V(b + 2)}")
        E(f"v_max_f32 {V(mx[nt])}, {V(mx[nt])}, {V(b + 3)}")
        E(f"v_mul_f32 {V(mx[nt])}, {S(sC)}, {V(mx[nt])}")
    g.barrier()
    sm = [vT + 2, vT + 3]
    first = [True, True]
    for T in range(4):
        for nt in range(2):
            for t in range(2):
                rs = [Sreg(T, nt, 8 * t + e) for e in range(8)]
                for r in rs:
                    E(f"v_fma_f32 {V(r)}, {V(r)}, {S(sC)}, -{V(mx[nt])}")
                for r in rs:
                    E(f"v_exp_f32 {V(r)}, {V(r)}")
                tmp = vT + 4 + ((T * 4 + nt * 2 + t) % 3) * 4
                for k in range(4):
                    E(f"v_cvt_pk_bf16_f32 {V(tmp + k)}, {V(rs[2 * k])}, {V(rs[2 * k + 1])}")
                E(f"ds_write_b128 {V(vPW)}, {V(tmp, 4)} offset:{X_BASE + (2 * T + t) * 2048 + nt * 1024}")
                E(f"v_add_f32 {V(rs[0])}, {V(rs[0])}, {V(rs[1])}")
                E(f"v_add_f32 {V(rs[2])}, {V(rs[2])}, {V(rs[3])}")
                E(f"v_add_f32 {V(rs[4])}, {V(rs[4])}, {V(rs[5])}")
                E(f"v_add_f32 {V(rs[6])}, {V(rs[6])}, {V(rs[7])}")
                E(f"v_add_f32 {V(rs[0])}, {V(rs[0])}, {V(rs[2])}")
                E(f"v_add_f32 {V(rs[4])}, {V(rs[4])}, {V(rs[6])}")
                if first[nt]:
                    E(f"v_add_f32 {V(sm[nt])}, {V(rs[0])}, {V(rs[4])}")
                    first[nt] = False
                else:
                    E(f"v_add_f32 {V(rs[0])}, {V(rs[0])}, {V(rs[4])}")
                    E(f"v_add_f32 {V(sm[nt])}, {V(sm[nt])}, {V(rs[0])}")
    E(f"v_permlane32_swap_b32 {V(sm[0])}, {V(sm[1])}")
    E(f"v_add_f32 {V(sm[0])}, {V(sm[0])}, {V(sm[1])}")
    g.barrier()
    if args.dump == "p":
        E(f"v_mov_b32 {V(126)}, {V(sm[0])}")
        dump_x(65536)
        E(f"v_mov_b32 {V(sm[0])}, {V(126)}")
    stamp()
    def p_reads(i):
        out = []
        bb = bbuf(G_V + i)
        for ks2 in range(2):
            for nt in range(2):
                def f(ks2=ks2, nt=nt):
                    off = X_BASE + ((2 * i + ks2) * 2 + nt) * 1024
                    E(f"ds_read_b128 {A(bb + (ks2 * 2 + nt) * 4, 4)}, {V(vLin)} offset:{off}")
                out.append(f)
        return out
    run(p_reads(0))
    for i in range(NG_V):
        G = G_V + i
        ab, bb = abuf(G), bbuf(G)
        mf = []
        for ks in range(2):
            for mt in range(2):
                for nt in range(2):
                    acc = V(ACC + (mt * 2 + nt) * 16, 16)
                    c = "0" if (i == 0 and ks == 0) else acc
                    mf.append(f"{M32} {acc}, {V(ab + (ks * 2 + mt) * 4, 4)}, {A(bb + (ks * 2 + nt) * 4, 4)}, {c}")
        fill = []
        if i + 1 < NG_V:
            fill += p_reads(i + 1)
            fill += a_reads(G + 1)
        fill += dma_group(G + NSLOT)
        interleave(mf, fill)
    stamp()
    g.barrier()
    E(f"ds_write_b32 {V(vSTw)}, {V(sm[0])} offset:{SUMS}")
    for mt in range(2):
        for nt in range(2):
            acc = ACC + (mt * 2 + nt) * 16
            for t in range(2):
                tmp = vT + ((mt * 4 + nt * 2 + t) % 3) * 4 + 4
                for k in range(4):
                    E(f"v_cvt_pk_bf16_f32 {V(tmp + k)}, {V(acc + 8 * t + 2 * k)}, {V(acc + 8 * t + 2 * k + 1)}")
                E(f"ds_write_b128 {V(vOW)}, {V(tmp, 4)} offset:{X_BASE + mt * 4096 + nt * 2048 + t * 512}")
    run(a_reads(G_WO))
    g.barrier()
    if args.dump == "o":
        dump_x(36864)
    stamp()
    def o_reads(s):
        out = []
        bb = bbuf(s)
        for u in range(4):
            def f(u=u):
                E(f"ds_read_b128 {A(bb + u * 4, 4)}, {V(vLin)} offset:{X_BASE + (s * 4 + u) * 1024}")
            out.append(f)
        return out
    run(o_reads(0))
    for u in range(4):
        E(f"ds_read_b128 {V(vT + u * 4, 4)}, {V(vSMr)} offset:{SUMS + u * 256}")
    for s in range(8):
        G = G_WO + 2 * s
        ab, bb = abuf(s), bbuf(s)
        mf = []
        for m in range(7):
            for u in range(4):
                acc = V(ACC + (m * 4 + u) * 4, 4)
                c = "0" if s == 0 else acc
                mf.append(f"{M16} {acc}, {V(ab + m * 4, 4)}, {A(bb + u * 4, 4)}, {c}")
        fill = []
        if s == 0:
            for u in range(4):
                def f(u=u):
                    b = vT + u * 4
                    E(f"v_add_f32 {V(b)}, {V(b)}, {V(b + 1)}")
                    E(f"v_add_f32 {V(b + 2)}, {V(b + 2)}, {V(b + 3)}")
                    E(f"v_add_f32 {V(b)}, {V(b)}, {V(b + 2)}")
                    E(f"v_rcp_f32 {V(b)}, {V(b)}")
                fill.append(f)
        if s + 1 < 8:
            fill += o_reads(s + 1)
            fill += a_reads(G + 2)
        fill += dma_group(G + NSLOT) + dma_group(G + 1 + NSLOT)
        interleave(mf, fill, lead=2)
    stamp()
    fl = (" " + args.stsc) if args.stsc else ""
    cnt = 0
    for m in range(7):
        for u in range(4):
            acc = ACC + (m * 4 + u) * 4
            rinv = V(vT + u * 4)
            for k in range(4):
                E(f"v_mul_f32 {V(acc + k)}, {V(acc + k)}, {rinv}")
            if PART_F32:
                E(f"buffer_store_dwordx4 {V(acc, 4)}, {V(vOut)}, {S(SRD_P, 4)}, {S(sST + u)} offen offset:{m * 64}{fl}")
            else:
                E(f"v_cvt_pk_bf16_f32 {V(acc)}, {V(acc)}, {V(acc + 1)}")
                E(f"v_cvt_pk_bf16_f32 {V(acc + 1)}, {V(acc + 2)}, {V(acc + 3)}")
                E(f"buffer_store_dwordx2 {V(acc, 2)}, {V(vOut)}, {S(SRD_P, 4)}, {S(sST + u)} offen offset:{m * 32}{fl}")
    if args.stamps:
        g.wait_vm()
        stamp()
        n = stamp_n[0]
        E(f"v_mov_b32 {V(vT)}, 0")
        for k in range(n):
            E(f"s_sub_u32 {S(sT0)}, {S(sTM + 2 * k)}, {S(sTM)}")
            E(f"v_mov_b32 {V(vT + 1)}, {S(sT0)}")
            E(f"v_cmp_eq_u32 vcc, {k}, {V(vL)}")
            E(f"v_cndmask_b32 {V(vT)}, {V(vT)}, {V(vT + 1)}, vcc")
        E(f"v_mov_b32 {V(vT + 1)}, {S(sTM)}")
        E(f"v_cmp_eq_u32 vcc, 63, {V(vL)}")
        E(f"v_cndmask_b32 {V(vT)}, {V(vT)}, {V(vT + 1)}, vcc")
        E(f"v_lshlrev_b32 {V(vT + 2)}, 2, v0")
        E(f"buffer_store_dword {V(vT)}, {V(vT + 2)}, {S(SRD_D, 4)}, 0 offen")
    g.raw("K1_END:")
    g.raw("s_endpgm")


def k2():
    h = Gen()
    e = h.emit
    h.raw("s_cmp_ge_u32 s2, 896")
    h.raw("s_cbranch_scc1 K2_END")
    h.raw("s_load_dwordx2 s[4:5], s[0:1], 80")
    h.raw("s_load_dwordx2 s[6:7], s[0:1], 96")
    e("s_mul_hi_u32 s3, s2, 0x4924925")
    e("s_mul_i32 s8, s3, 56")
    e("s_sub_u32 s8, s2, s8")
    e("s_lshl_b32 s8, s8, 6")
    e("v_add_u32 v1, s8, v0")
    esz = 4 if PART_F32 else 2
    e(f"v_lshlrev_b32 v2, {5 if PART_F32 else 4}, v1")
    e("s_mov_b32 s9, 0x4924925")
    e("v_mul_hi_u32 v3, v1, s9")
    e("v_mul_u32_u24 v4, 56, v3")
    e("v_sub_u32 v4, v1, v4")
    e("s_and_b32 s10, s3, 7")
    e("s_lshr_b32 s11, s3, 3")
    e("s_mul_i32 s10, s10, 114688")
    e("s_mul_i32 s11, s11, 896")
    e("s_add_u32 s10, s10, s11")
    e("v_mul_u32_u24 v3, 1792, v3")
    e("v_lshl_add_u32 v3, v4, 4, v3")
    e("v_add_u32 v3, s10, v3")
    h.raw("s_waitcnt lgkmcnt(0)")
    e(f"s_mul_i32 s12, s3, {16 * PART_BYTES}")
    e("s_add_u32 s16, s6, s12")
    e("s_addc_u32 s17, s7, 0")
    e("s_and_b32 s17, s17, 0xffff")
    e(f"s_mov_b32 s18, {16 * PART_BYTES}")
    e("s_mov_b32 s19, 0x00020000")
    e("s_mov_b32 s20, s4")
    e("s_and_b32 s21, s5, 0xffff")
    e(f"s_mov_b32 s22, {8 * 64 * 896 * 2}")
    e("s_mov_b32 s23, 0x00020000")
    for hh in range(16):
        e(f"s_mov_b32 s{24 + hh}, {hh * PART_BYTES}")
    if PART_F32:
        for hh in range(16):
            e(f"buffer_load_dwordx4 {V(8 + hh * 8, 4)}, v2, s[16:19], s{24 + hh} offen")
            e(f"buffer_load_dwordx4 {V(12 + hh * 8, 4)}, v2, s[16:19], s{24 + hh} offen offset:16")
        for hh in range(1, 16):
            for k in range(0, 8, 2):
                e(f"v_pk_add_f32 {V(8 + k, 2)}, {V(8 + k, 2)}, {V(8 + hh * 8 + k, 2)}")
        for k in range(4):
            e(f"v_cvt_pk_bf16_f32 {V(4 + k)}, {V(8 + 2 * k)}, {V(9 + 2 * k)}")
        nv = 136
    else:
        for hh in range(16):
            e(f"buffer_load_dwordx4 {V(16 + hh * 4, 4)}, v2, s[16:19], s{24 + hh} offen")
        for hh in range(16):
            for k in range(4):
                src = 16 + hh * 4 + k
                if hh == 0:
                    e(f"v_lshlrev_b32 {V(8 + 2 * k)}, 16, {V(src)}")
                    e(f"v_and_b32 {V(9 + 2 * k)}, 0xffff0000, {V(src)}")
                else:
                    e(f"v_lshlrev_b32 {V(4 + (k % 2) * 2)}, 16, {V(src)}")
                    e(f"v_and_b32 {V(5 + (k % 2) * 2)}, 0xffff0000, {V(src)}")
                    e(f"v_pk_add_f32 {V(8 + 2 * k, 2)}, {V(8 + 2 * k, 2)}, {V(4 + (k % 2) * 2, 2)}")
        for k in range(4):
            e(f"v_cvt_pk_bf16_f32 {V(4 + k)}, {V(8 + 2 * k)}, {V(9 + 2 * k)}")
        nv = 80
    e("buffer_store_dwordx4 v[4:7], v3, s[20:23], 0 offen")
    h.raw("K2_END:")
    h.raw("s_endpgm")
    return h.finish(), nv


k1()
body1 = g.finish()
nins = sum(1 for l in body1.splitlines() if l.strip() and not l.strip().startswith(';') and not l.strip().endswith(':'))
code_bytes = nins * 8
body2, nv2 = k2()

desc = lambda name, nv, acc, ns: f""".p2align 6
.amdhsa_kernel {name}
  .amdhsa_next_free_vgpr {nv}
  .amdhsa_next_free_sgpr {ns}
  .amdhsa_accum_offset {acc}
  .amdhsa_group_segment_fixed_size 0
  .amdhsa_kernarg_size 104
  .amdhsa_user_sgpr_count 2
  .amdhsa_user_sgpr_kernarg_segment_ptr 1
  .amdhsa_system_sgpr_workgroup_id_x 1
.end_amdhsa_kernel
"""
K1 = NAME + "_kernel"
K2 = "reduce_partials_kernel"
txt = HEADER
txt += f"; @launch kernel={K1} grid=(256,1,1) block=(256,1,1) lds={LDS_BYTES}\n"
if not args.nok2:
    txt += f"; @launch kernel={K2} grid=(896,1,1) block=(64,1,1) lds=0\n"
txt += f""".amdgcn_target "amdgcn-amd-amdhsa--gfx950"
.text
.globl {K1}
.p2align 8
.type {K1},@function
{K1}:
{body1}
.globl {K2}
.p2align 8
.type {K2},@function
{K2}:
{body2}
CODE_END:
.fill 64, 4, 0xbf800000
.section .rodata,"a"
{desc(K1, 512, 256, 102)}
{desc(K2, nv2, (nv2 + 3) // 4 * 4, 48)}
"""
open(args.o, "w").write(txt)
print(f"wrote {args.o}: k1 {nins} instrs")
```

```python
import sys, math, argparse
from asmgen import Gen, V, A, S

NAME = "concat_heads__gqa_block_cached__gqa_block_cached__near_ridge"
HEADER = open("cdna_kernels/" + NAME + ".s.ref").read().split("; Override launch")[0]

ap = argparse.ArgumentParser()
ap.add_argument("-o", default="k.s")
ap.add_argument("--part", default="bf16", choices=["bf16", "f32"])
ap.add_argument("--dump", default="", help="debug: dump stage (q|p|o) frags of X region to ws+64MB")
ap.add_argument("--stamps", action="store_true")
ap.add_argument("--nok2", action="store_true")
ap.add_argument("--kvnt", action="store_true")
ap.add_argument("--stsc", default="", help="cache flags for partial stores e.g. 'sc1' or 'nt'")
ap.add_argument("--nopf", action="store_true")
ap.add_argument("--kvmode", default="normal")
ap.add_argument("--nodma", action="store_true")
ap.add_argument("--noread", action="store_true")
ap.add_argument("--nomfma", action="store_true")
ap.add_argument("--rot", type=int, default=1)
ap.add_argument("--dshift", type=int, default=0)
ap.add_argument("--rtail", type=int, default=1)
ap.add_argument("--wnt", action="store_true")
args = ap.parse_args()

PART_F32 = args.part == "f32"
PART_BYTES = 64 * 448 * (4 if PART_F32 else 2)

X_BASE = 0
STATS = 57344
SUMS = 32768
RING0 = 65536
NSLOT = 6
RING_W = NSLOT * 4096
LDS_BYTES = RING0 + 4 * RING_W
assert LDS_BYTES <= 163840

sW, sRING, sOFF, sC = 4, 5, 6, 7
SRD_X, SRD_WQ, SRD_K, SRD_V, SRD_WO, SRD_P = 8, 12, 16, 20, 24, 28
sB, sH, sBR, sKV = 32, 33, 34, 35
sPTR = 36
sPC = 62
sT0, sT1, sT2, sT3 = 64, 65, 66, 67
sST = 68
SRD_D = 72
sTM = 76
sROT8 = 78
sRQ = 80
sRO = 88

vL = 1
vXD = 2
vWD = 4
vKD = 8
vVD = 12
vOD = 16
vRBx = 20
vRBk = 24
vTRw = 28
vTRv = 30
vTRo = 32
vLin = 39
vQW = 40
vPW = 41
vOW = 42
vSTw = 43
vSTr = 44
vSMw = 45
vSMr = 46
vOut = 47
vT = 48
ABUF = 64
ACC = 128
BBUF = 128
QREG = 0

g = Gen()
def E(text, tag=None):
    if args.noread and text.startswith("ds_read"):
        return
    if args.nomfma and text.startswith("v_mfma"):
        return
    g.emit(text, tag)

stamp_n = [0]
STAMP_A = 200
def stamp():
    if not args.stamps:
        return
    k = stamp_n[0]; stamp_n[0] += 1
    g.raw(f"s_memtime {S(sTM, 2)}")
    g.raw("s_waitcnt lgkmcnt(0)")
    g.lg = []
    E(f"v_accvgpr_write_b32 {A(STAMP_A + k)}, {S(sTM)}")


def prologue():
    g.raw("s_cmp_ge_u32 s2, 256")
    g.raw("s_cbranch_scc1 K1_END")
    g.raw(f"s_load_dwordx16 {S(sPTR, 16)}, s[0:1], 0")
    g.raw(f"s_load_dwordx8 {S(sPTR + 16, 8)}, s[0:1], 64")
    g.raw(f"s_load_dwordx2 {S(sPTR + 24, 2)}, s[0:1], 96")
    if not args.nopf:
        E(f"s_getpc_b64 {S(sPC, 2)}")
        g.raw("K1_PC:")
        E(f"v_lshlrev_b32 {V(vT)}, 7, v0")
        E(f"v_min_u32 {V(vT + 4)}, CODE_END-K1_PC-4, {V(vT)}")
        E(f"global_load_dword {V(vT + 1)}, {V(vT + 4)}, {S(sPC, 2)}", tag="pf")
        E(f"v_add_u32 {V(vT)}, 0x8000, {V(vT)}")
        E(f"v_min_u32 {V(vT + 4)}, CODE_END-K1_PC-4, {V(vT)}")
        E(f"global_load_dword {V(vT + 2)}, {V(vT + 4)}, {S(sPC, 2)}", tag="pf")
    E(f"v_and_b32 {V(vL)}, 63, v0")
    E(f"v_lshrrev_b32 {V(vT + 3)}, 6, v0")
    E(f"v_readfirstlane_b32 {S(sW)}, {V(vT + 3)}")
    E(f"s_and_b32 {S(sT0)}, s2, 7")
    E(f"s_lshr_b32 {S(sT1)}, s2, 3")
    E(f"s_lshr_b32 {S(sT2)}, {S(sT1)}, 4")
    E(f"s_lshl_b32 {S(sT0)}, {S(sT0)}, 1")
    E(f"s_add_u32 {S(sT0)}, {S(sT0)}, {S(sT2)}")
    E(f"s_lshr_b32 {S(sBR)}, {S(sT0)}, 3")
    E(f"s_and_b32 {S(sKV)}, {S(sT0)}, 7")
    E(f"s_lshr_b32 {S(sB)}, {S(sT1)}, 1")
    E(f"s_and_b32 {S(sB)}, {S(sB)}, 7")
    E(f"s_and_b32 {S(sT2)}, {S(sT1)}, 1")
    E(f"s_lshl_b32 {S(sH)}, {S(sKV)}, 1")
    E(f"s_add_u32 {S(sH)}, {S(sH)}, {S(sT2)}")
    E(f"s_mul_i32 {S(sRING)}, {S(sW)}, {RING_W}")
    E(f"s_add_u32 {S(sRING)}, {S(sRING)}, {RING0}")
    E(f"s_mov_b32 {S(sC)}, 0x{f32bits(math.log2(math.e) / 16.0):08x}")
    E(f"s_min_u32 {S(sT0)}, {S(sB)}, 6" if args.rot else f"s_mov_b32 {S(sT0)}, 0")
    if args.rot:
        E(f"s_cmp_eq_u32 {S(sB)}, 7")
        E(f"s_cselect_b32 {S(sT0)}, 3, {S(sT0)}")
    for i in range(7):
        E(f"s_add_u32 {S(sT1)}, {S(sT0)}, {i}")
        E(f"s_sub_u32 {S(sT2)}, {S(sT1)}, 7")
        E(f"s_cmp_ge_u32 {S(sT1)}, 7")
        E(f"s_cselect_b32 {S(sT1)}, {S(sT2)}, {S(sT1)}")
        E(f"s_lshl_b32 {S(sRQ + i)}, {S(sT1)}, 19")
    E(f"s_mov_b32 {S(sROT8)}, {S(sB)}" if args.rot else f"s_mov_b32 {S(sROT8)}, 0")
    for i in range(8):
        E(f"s_add_u32 {S(sT1)}, {S(sROT8)}, {i}")
        E(f"s_and_b32 {S(sT1)}, {S(sT1)}, 7")
        E(f"s_mul_i32 {S(sRO + i)}, {S(sT1)}, 28672")
    lane_consts()
    g.raw("s_waitcnt lgkmcnt(0)")
    E(f"s_cmp_eq_u32 {S(sBR)}, 0")
    for i in range(0, 10, 2):
        E(f"s_cselect_b64 {S(sPTR + i, 2)}, {S(sPTR + i, 2)}, {S(sPTR + 10 + i, 2)}")
    def srd(base, ptr, off_sreg, nrec):
        E(f"s_add_u32 {S(base)}, {S(ptr)}, {S(off_sreg)}")
        E(f"s_addc_u32 {S(base + 1)}, {S(ptr + 1)}, 0")
        E(f"s_and_b32 {S(base + 1)}, {S(base + 1)}, 0xffff")
        if isinstance(nrec, int):
            E(f"s_mov_b32 {S(base + 2)}, {nrec}")
        else:
            E(f"s_sub_u32 {S(base + 2)}, {nrec[0]}, {S(nrec[1])}")
        E(f"s_mov_b32 {S(base + 3)}, 0x00020000")
    E(f"s_mul_i32 {S(sT0)}, {S(sB)}, 57344")
    srd(SRD_X, sPTR + 0, sT0, 57344)
    E(f"s_lshl_b32 {S(sT0)}, {S(sH)}, 9")
    srd(SRD_WQ, sPTR + 6, sT0, (448 * 8192, sT0))
    E(f"s_lshl_b32 {S(sT0)}, {S(sB)}, 3")
    E(f"s_add_u32 {S(sT0)}, {S(sT0)}, {S(sKV)}")
    E(f"s_lshl_b32 {S(sT0)}, {S(sT0)}, 18")
    if args.kvmode == "same":
        E(f"s_lshl_b32 {S(sT0)}, {S(sKV)}, 18")
    if args.kvmode == "swapkv":
        E(f"s_and_b32 {S(sT2)}, {S(sH)}, 1")
        E(f"s_cmp_eq_u32 {S(sT2)}, 0")
        E(f"s_mov_b64 {S(sPC, 2)}, {S(sPTR + 2, 2)}")
        E(f"s_cselect_b64 {S(sPTR + 2, 2)}, {S(sPTR + 2, 2)}, {S(sPTR + 4, 2)}")
        E(f"s_cselect_b64 {S(sPTR + 4, 2)}, {S(sPTR + 4, 2)}, {S(sPC, 2)}")
    srd(SRD_K, sPTR + 2, sT0, 262144)
    srd(SRD_V, sPTR + 4, sT0, 262144)
    E(f"s_mul_i32 {S(sT0)}, {S(sH)}, 229376")
    srd(SRD_WO, sPTR + 8, sT0, 229376)
    E(f"s_lshl_b32 {S(sT0)}, {S(sBR)}, 3")
    E(f"s_add_u32 {S(sT0)}, {S(sT0)}, {S(sB)}")
    E(f"s_lshl_b32 {S(sT0)}, {S(sT0)}, 4")
    E(f"s_add_u32 {S(sT0)}, {S(sT0)}, {S(sH)}")
    E(f"s_mul_i32 {S(sT1)}, {S(sT0)}, {PART_BYTES}")
    srd(SRD_P, sPTR + 24, sT1, PART_BYTES)
    if args.dump or args.stamps:
        E(f"s_lshl_b32 {S(sT1)}, {S(sT0)}, 16")
        E(f"s_add_u32 {S(sT1)}, {S(sT1)}, {64 << 20}")
        srd(SRD_D, sPTR + 24, sT1, 65536)
    rowb = 448 * (4 if PART_F32 else 2)
    for u in range(4):
        E(f"s_mov_b32 {S(sST + u)}, {u * 16 * rowb}")


def f32bits(x):
    import struct
    return struct.unpack("<I", struct.pack("<f", x))[0]


def lane_consts():
    t = [vT + 4 + i for i in range(10)]
    l = V(vL)
    l3, l7, l4, l35 = t[0], t[1], t[2], t[3]
    E(f"v_lshrrev_b32 {V(l3)}, 3, {l}")
    E(f"v_and_b32 {V(l7)}, 7, {l}")
    E(f"v_lshrrev_b32 {V(l4)}, 4, {l}")
    E(f"s_lshl_b32 {S(sT3)}, {S(sW)}, 7")
    E(f"s_mul_i32 {S(sT0)}, {S(sW)}, {16 * 896}")
    E(f"v_mul_u32_u24 {V(t[4])}, 896, {V(l3)}")
    E(f"v_add_u32 {V(t[4])}, {S(sT0)}, {V(t[4])}")
    E(f"v_xor_b32 {V(t[5])}, {V(l7)}, {V(l4)}")
    E(f"v_lshl_add_u32 {V(vXD)}, {V(t[5])}, 4, {V(t[4])}")
    E(f"v_xor_b32 {V(t[6])}, 4, {V(t[5])}")
    E(f"v_lshl_add_u32 {V(vXD + 1)}, {V(t[6])}, 4, {V(t[4])}")
    E(f"v_add_u32 {V(vXD + 1)}, {8 * 896}, {V(vXD + 1)}")
    E(f"s_lshl_b32 {S(sT0)}, {S(sW)}, 16")
    E(f"v_lshl_add_u32 {V(t[4])}, {V(l3)}, 9, {S(sT0)}")
    for j in range(4):
        E(f"v_lshl_add_u32 {V(vKD + j)}, {V(t[5] if j % 2 == 0 else t[6])}, 4, {V(t[4])}")
        if j:
            E(f"v_add_u32 {V(vKD + j)}, {j * 3072}, {V(vKD + j)}")
    E(f"v_and_b32 {V(t[7])}, 1, {V(l4)}")
    E(f"v_lshlrev_b32 {V(t[7])}, 2, {V(t[7])}")
    E(f"v_xor_b32 {V(t[7])}, {V(l7)}, {V(t[7])}")
    E(f"v_lshl_add_u32 {V(t[7])}, {V(t[7])}, 4, {S(sT3)}")
    E(f"v_lshl_add_u32 {V(vWD)}, {V(l3)}, 13, {V(t[7])}")
    E(f"v_lshl_add_u32 {V(vVD)}, {V(l3)}, 9, {V(t[7])}")
    for j in range(1, 4):
        E(f"v_add_u32 {V(vWD + j)}, {j * (65536 - 1024)}, {V(vWD)}")
        E(f"v_add_u32 {V(vVD + j)}, {j * 3072}, {V(vVD)}")
    E(f"v_bfe_u32 {V(t[4])}, {l}, 1, 3")
    E(f"v_xor_b32 {V(t[4])}, {V(t[4])}, {V(l4)}")
    E(f"v_xor_b32 {V(t[5])}, 4, {V(t[4])}")
    E(f"v_min_u32 {V(t[4])}, 6, {V(t[4])}")
    E(f"v_min_u32 {V(t[5])}, 6, {V(t[5])}")
    E(f"v_and_b32 {V(t[6])}, 1, {l}")
    E(f"v_lshlrev_b32 {V(t[6])}, 4, {V(t[6])}")
    E(f"v_mul_u32_u24 {V(t[7])}, 896, {V(l4)}")
    E(f"s_mul_i32 {S(sT0)}, {S(sW)}, 224")
    E(f"v_add3_u32 {V(t[6])}, {V(t[6])}, {V(t[7])}, {S(sT0)}")
    for j in range(4):
        E(f"v_lshl_add_u32 {V(vOD + j)}, {V(t[4] if j < 2 else t[5])}, 5, {V(t[6])}")
        if j:
            E(f"v_add_u32 {V(vOD + j)}, {j * (3584 - 1024)}, {V(vOD + j)}")
    n, hf = t[4], t[5]
    E(f"v_and_b32 {V(n)}, 31, {l}")
    E(f"v_lshrrev_b32 {V(hf)}, 5, {l}")
    E(f"v_lshrrev_b32 {V(t[6])}, 3, {V(n)}")
    E(f"v_lshlrev_b32 {V(t[6])}, 10, {V(t[6])}")
    E(f"v_lshl_add_u32 {V(t[6])}, {V(l7)}, 7, {V(t[6])}")
    E(f"v_bfe_u32 {V(t[7])}, {V(n)}, 1, 3")
    E(f"v_xor_b32 {V(t[7])}, {V(t[7])}, {V(hf)}")
    for i in range(4):
        E(f"v_xor_b32 {V(t[8])}, {2 * i}, {V(t[7])}")
        E(f"v_lshl_add_u32 {V(vRBx + i)}, {V(t[8])}, 4, {V(t[6])}")
        E(f"v_add_u32 {V(vRBk + i)}, {S(sRING)}, {V(vRBx + i)}")
    r, c = t[6], t[7]
    E(f"v_bfe_u32 {V(r)}, {l}, 2, 2")
    E(f"v_and_b32 {V(c)}, 3, {l}")
    E(f"v_lshlrev_b32 {V(t[8])}, 7, {V(r)}")
    E(f"v_lshrrev_b32 {V(t[9])}, 1, {V(r)}")
    E(f"v_lshl_add_u32 {V(t[8])}, {V(t[9])}, 6, {V(t[8])}")
    E(f"v_and_b32 {V(t[9])}, 1, {V(l4)}")
    E(f"v_lshl_add_u32 {V(t[8])}, {V(t[9])}, 5, {V(t[8])}")
    E(f"v_and_b32 {V(t[9])}, 1, {V(c)}")
    E(f"v_lshl_add_u32 {V(t[8])}, {V(t[9])}, 4, {V(t[8])}")
    E(f"v_lshrrev_b32 {V(t[9])}, 1, {V(c)}")
    E(f"v_lshl_add_u32 {V(t[8])}, {V(t[9])}, 3, {V(t[8])}")
    E(f"v_add_u32 {V(t[8])}, {S(sRING)}, {V(t[8])}")
    E(f"v_lshl_add_u32 {V(vTRw)}, {V(hf)}, 10, {V(t[8])}")
    E(f"v_xor_b32 {V(vTRw + 1)}, 64, {V(vTRw)}")
    E(f"v_lshl_add_u32 {V(vTRv)}, {V(hf)}, 9, {V(t[8])}")
    E(f"v_xor_b32 {V(vTRv + 1)}, 64, {V(vTRv)}")
    E(f"v_lshlrev_b32 {V(t[8])}, 11, {V(l4)}")
    E(f"v_lshl_add_u32 {V(t[8])}, {V(r)}, 8, {V(t[8])}")
    E(f"v_lshl_add_u32 {V(t[8])}, {V(c)}, 3, {V(t[8])}")
    E(f"v_add_u32 {V(t[8])}, {S(sRING)}, {V(t[8])}")
    E(f"v_and_b32 {V(t[9])}, 1, {V(l4)}")
    E(f"v_lshl_or_b32 {V(t[9])}, {V(t[9])}, 2, {V(r)}")
    E(f"v_lshl_add_u32 {V(vTRo)}, {V(t[9])}, 5, {V(t[8])}")
    for m in range(1, 7):
        E(f"v_xor_b32 {V(vTRo + m)}, {m * 32}, {V(vTRo)}")
    E(f"v_lshlrev_b32 {V(vLin)}, 4, {l}")
    E(f"s_lshl_b32 {S(sT0)}, {S(sW)}, 13")
    E(f"v_add_u32 {V(vQW)}, {S(sT0)}, {V(vLin)}")
    E(f"s_lshl_b32 {S(sT1)}, {S(sW)}, 14")
    E(f"v_add_u32 {V(vPW)}, {S(sT1)}, {V(vLin)}")
    E(f"v_lshrrev_b32 {V(t[8])}, 4, {V(n)}")
    E(f"v_lshlrev_b32 {V(t[8])}, 10, {V(t[8])}")
    E(f"v_lshl_add_u32 {V(t[8])}, {V(hf)}, 8, {V(t[8])}")
    E(f"v_and_b32 {V(t[9])}, 15, {l}")
    E(f"v_lshl_add_u32 {V(t[8])}, {V(t[9])}, 4, {V(t[8])}")
    for mt in range(2):
        E(f"s_lshl_b32 {S(sT1)}, {S(sW)}, 1")
        E(f"s_add_u32 {S(sT1)}, {S(sT1)}, {8 + mt}")
        E(f"s_sub_u32 {S(sT1)}, {S(sT1)}, {S(sROT8)}")
        E(f"s_and_b32 {S(sT1)}, {S(sT1)}, 7")
        E(f"s_lshl_b32 {S(sT1)}, {S(sT1)}, 12")
        E(f"v_add_u32 {V(vOW if mt == 0 else vSMw)}, {S(sT1)}, {V(t[8])}")
    E(f"s_lshl_b32 {S(sT0)}, {S(sW)}, 2")
    E(f"v_add_u32 {V(vSTw)}, {S(sT0)}, {V(vLin)}")
    E(f"v_lshlrev_b32 {V(vSTr)}, 4, {V(n)}")
    E(f"v_lshlrev_b32 {V(vSMr)}, 4, {V(t[9])}")
    esz = 4 if PART_F32 else 2
    E(f"v_mul_u32_u24 {V(t[8])}, {448 * esz}, {V(t[9])}")
    E(f"v_lshl_add_u32 {V(t[8])}, {V(l4)}, {4 if PART_F32 else 3}, {V(t[8])}")
    E(f"s_mul_i32 {S(sT0)}, {S(sW)}, {112 * esz}")
    E(f"v_add_u32 {V(vOut)}, {S(sT0)}, {V(t[8])}")


NG_WQ, NG_K, NG_V, NG_WO = 14, 16, 16, 16
G_K = NG_WQ
G_V = G_K + NG_K
G_WO = G_V + NG_V
NG = G_WO + NG_WO


def dma_group(G):
    if G >= NG or (args.nodma and G >= NSLOT):
        return []
    slot = G % NSLOT
    if G < G_K:
        srd, vo, so, fl = SRD_WQ, vWD, (sRQ + G // 2, (G % 2) * 262144), (" nt" if args.wnt else "")
    elif G < G_V:
        i = G - G_K
        srd, vo, so, fl = SRD_K, vKD, (i // 4) * 16384 + (i % 4) * 128, (" nt" if args.kvnt else "")
    elif G < G_WO:
        srd, vo, so, fl = SRD_V, vVD, (G - G_V) * 16384, (" nt" if args.kvnt else "")
    else:
        srd, vo, so, fl = SRD_WO, vOD, (sRO + (G - G_WO) // 2, ((G - G_WO) % 2) * 14336), (" nt" if args.wnt else "")
    out = []
    def setup():
        if G >= NSLOT:
            g.wait_ds(("A", G - NSLOT))
        E(f"s_add_u32 m0, {S(sRING)}, {slot * 4096}")
        if isinstance(so, tuple):
            E(f"s_add_u32 {S(sOFF)}, {S(so[0])}, {so[1]}")
        else:
            E(f"s_mov_b32 {S(sOFF)}, {so}")
    setup.is_setup = True
    out.append(setup)
    for j in range(4):
        def f(j=j):
            off = f" offset:{j * 1024}" if j else ""
            E(f"buffer_load_dwordx4 {V(vo + j)}, {S(srd, 4)}, {S(sOFF)} offen{off}{fl} lds", tag=("G", G))
        out.append(f)
    return out


def dma_x():
    E(f"s_lshl_b32 {S(sT0)}, {S(sW)}, 11")
    for cg in range(7):
        E(f"s_lshr_b32 {S(sOFF)}, {S(sRQ + cg)}, 12")
        for par in range(2):
            E(f"s_add_u32 m0, {S(sT0)}, {X_BASE + (cg * 8 + par) * 1024}")
            E(f"buffer_load_dwordx4 {V(vXD + par)}, {S(SRD_X, 4)}, {S(sOFF)} offen lds", tag="X")


def abuf(G):
    return ABUF + (G % 2) * 28


def bbuf(G):
    return BBUF + (G % 2) * 16


def a_reads(G):
    out = []
    slot = G % NSLOT
    so = slot * 4096
    tag = ("A", G)
    if G < G_K or G_V <= G < G_WO:
        isw = G < G_K
        base = vTRw if isw else vTRv
        ab = abuf(G)
        first = True
        for ks in range(2):
            for mt in range(2):
                for r2 in range(2):
                    off = so + ks * 2048 + r2 * (512 if isw else 1024)
                    dst = ab + (ks * 2 + mt) * 4 + r2 * 2
                    def f(dst=dst, mt=mt, off=off, first=first):
                        if first:
                            g.wait_vm(("G", G))
                        E(f"ds_read_b64_tr_b16 {V(dst, 2)}, {V(base + mt)} offset:{off}", tag=tag)
                    out.append(f)
                    first = False
    elif G < G_V:
        ab = abuf(G)
        for i in range(4):
            def f(i=i):
                if i == 0:
                    g.wait_vm(("G", G))
                E(f"ds_read_b128 {V(ab + i * 4, 4)}, {V(vRBk + i)} offset:{so}", tag=tag)
            out.append(f)
    else:
        assert (G - G_WO) % 2 == 0 and slot % 2 == 0
        ab = abuf((G - G_WO) // 2)
        first = True
        for m in range(7):
            for r2 in range(2):
                def f(m=m, r2=r2, first=first):
                    if first:
                        g.wait_vm(("G", G + 1))
                    E(f"ds_read_b64_tr_b16 {V(ab + m * 4 + r2 * 2, 2)}, {V(vTRo + m)} offset:{so + r2 * 1024}",
                      tag=[("A", G), ("A", G + 1)])
                out.append(f)
                first = False
    return out


def interleave(mfmas, reads, dmas, lead=1):
    n = len(mfmas)
    gaps = [[] for _ in range(n)]
    units = []
    k = 0
    while k < len(dmas):
        if getattr(dmas[k], "is_setup", False):
            units.append([dmas[k], dmas[k + 1]]); k += 2
        else:
            units.append([dmas[k]]); k += 1
    dgaps = set()
    for i, u in enumerate(units):
        gi = (i * n) // max(len(units), 1) + args.dshift
        gi = min(gi, n - 1)
        gaps[gi] += u
        dgaps.add(gi)
    free = [i for i in range(lead - 1, n - args.rtail) if i not in dgaps] or [n - 1]
    for i, r in enumerate(reads):
        gaps[free[(i * len(free)) // len(reads)]].append(r)
    for k, m in enumerate(mfmas):
        E(m)
        for f in gaps[k]:
            f()


def run(fs):
    for f in fs:
        f()


def dump_x(nbytes):
    g.barrier()
    E(f"v_lshlrev_b32 {V(vT)}, 4, v0")
    for k in range(nbytes // 4096):
        E(f"ds_read_b128 {V(vT + 4, 4)}, {V(vT)} offset:{k * 4096}")
        E(f"s_mov_b32 {S(sT0)}, {k * 4096}")
        E(f"buffer_store_dwordx4 {V(vT + 4, 4)}, {V(vT)}, {S(SRD_D, 4)}, {S(sT0)} offen", tag="dbg")
        g.wait_vm("dbg")
    g.barrier()


M32 = "v_mfma_f32_32x32x16_bf16"
M16 = "v_mfma_f32_16x16x32_bf16"


def k1():
    prologue()
    stamp()
    dma_x()
    for G in range(NSLOT):
        run(dma_group(G))
    g.wait_vm("X")
    g.raw("s_barrier")
    stamp()
    def xb_reads(G):
        out = []
        bb = bbuf(G)
        for ks2 in range(2):
            ks = 2 * G + ks2
            for nt in range(2):
                def f(ks=ks, nt=nt, ks2=ks2):
                    off = X_BASE + ((ks >> 2) * 8 + 4 * nt) * 1024
                    E(f"ds_read_b128 {A(bb + (ks2 * 2 + nt) * 4, 4)}, {V(vRBx + (ks & 3))} offset:{off}")
                out.append(f)
        return out
    run(xb_reads(0))
    run(a_reads(0))
    for G in range(NG_WQ):
        ab, bb = abuf(G), bbuf(G)
        mf = []
        for ks in range(2):
            for mt in range(2):
                for nt in range(2):
                    acc = V(ACC + (mt * 2 + nt) * 16, 16)
                    c = "0" if (G == 0 and ks == 0) else acc
                    mf.append(f"{M32} {acc}, {V(ab + (ks * 2 + mt) * 4, 4)}, {A(bb + (ks * 2 + nt) * 4, 4)}, {c}")
        fill = []
        if G + 1 < NG_WQ:
            fill += xb_reads(G + 1)
        fill += a_reads(G + 1)
        interleave(mf, fill, dma_group(G + NSLOT))
    stamp()
    g.barrier()
    for mt in range(2):
        for nt in range(2):
            acc = ACC + (mt * 2 + nt) * 16
            for t in range(2):
                tmp = vT + ((mt * 4 + nt * 2 + t) % 4) * 4
                for k in range(4):
                    E(f"v_cvt_pk_bf16_f32 {V(tmp + k)}, {V(acc + 8 * t + 2 * k)}, {V(acc + 8 * t + 2 * k + 1)}")
                E(f"ds_write_b128 {V(vQW)}, {V(tmp, 4)} offset:{X_BASE + (2 * mt + t) * 2048 + nt * 1024}")
    g.barrier()
    if args.dump == "q":
        dump_x(32768)
    stamp()
    def q_reads(cg):
        out = []
        for i in range(4):
            ks = cg * 4 + i
            for nt in range(2):
                def f(ks=ks, nt=nt):
                    E(f"ds_read_b128 {A(QREG + (ks * 2 + nt) * 4, 4)}, {V(vLin)} offset:{X_BASE + (ks * 2 + nt) * 1024}")
                out.append(f)
        return out
    run(q_reads(0))
    for i in range(NG_K):
        G = G_K + i
        T, cg = i // 4, i % 4
        ab = abuf(G)
        mf = []
        for k4 in range(4):
            ks = cg * 4 + k4
            for nt in range(2):
                acc = V(ACC + (T * 2 + nt) * 16, 16)
                c = "0" if ks == 0 else acc
                mf.append(f"{M32} {acc}, {V(ab + k4 * 4, 4)}, {A(QREG + (ks * 2 + nt) * 4, 4)}, {c}")
        fill = []
        if T == 0 and cg < 3:
            fill += q_reads(cg + 1)
        fill += a_reads(G + 1)
        interleave(mf, fill, dma_group(G + NSLOT))
    stamp()
    def Sreg(T, nt, r):
        return ACC + (T * 2 + nt) * 16 + r
    mx = [vT, vT + 1]
    for nt in range(2):
        vals = [Sreg(T, nt, r) for T in range(4) for r in range(16)]
        ch = [vT + 4 + nt * 4 + k for k in range(4)]
        for k in range(4):
            vs = vals[k * 16:(k + 1) * 16]
            E(f"v_max3_f32 {V(ch[k])}, {V(vs[0])}, {V(vs[1])}, {V(vs[2])}")
        for step in range(3, 15, 2):
            for k in range(4):
                vs = vals[k * 16:(k + 1) * 16]
                E(f"v_max3_f32 {V(ch[k])}, {V(ch[k])}, {V(vs[step])}, {V(vs[step + 1])}")
        for k in range(4):
            vs = vals[k * 16:(k + 1) * 16]
            E(f"v_max_f32 {V(ch[k])}, {V(ch[k])}, {V(vs[15])}")
        E(f"v_max3_f32 {V(mx[nt])}, {V(ch[0])}, {V(ch[1])}, {V(ch[2])}")
        E(f"v_max_f32 {V(mx[nt])}, {V(mx[nt])}, {V(ch[3])}")
    E(f"v_permlane32_swap_b32 {V(mx[0])}, {V(mx[1])}")
    E(f"v_max_f32 {V(mx[0])}, {V(mx[0])}, {V(mx[1])}")
    E(f"ds_write_b32 {V(vSTw)}, {V(mx[0])} offset:{STATS}")
    g.barrier()
    E(f"ds_read_b128 {V(vT + 4, 4)}, {V(vSTr)} offset:{STATS}")
    E(f"ds_read_b128 {V(vT + 8, 4)}, {V(vSTr)} offset:{STATS + 512}")
    for nt in range(2):
        b = vT + 4 + nt * 4
        E(f"v_max3_f32 {V(mx[nt])}, {V(b)}, {V(b + 1)}, {V(b + 2)}")
        E(f"v_max_f32 {V(mx[nt])}, {V(mx[nt])}, {V(b + 3)}")
        E(f"v_mul_f32 {V(mx[nt])}, {S(sC)}, {V(mx[nt])}")
    g.barrier()
    sm = [vT + 2, vT + 3]
    first = [True, True]
    for T in range(4):
        for nt in range(2):
            for t in range(2):
                rs = [Sreg(T, nt, 8 * t + e) for e in range(8)]
                for r in rs:
                    E(f"v_fma_f32 {V(r)}, {V(r)}, {S(sC)}, -{V(mx[nt])}")
                for r in rs:
                    E(f"v_exp_f32 {V(r)}, {V(r)}")
                tmp = vT + 4 + ((T * 4 + nt * 2 + t) % 3) * 4
                for k in range(4):
                    E(f"v_cvt_pk_bf16_f32 {V(tmp + k)}, {V(rs[2 * k])}, {V(rs[2 * k + 1])}")
                E(f"ds_write_b128 {V(vPW)}, {V(tmp, 4)} offset:{X_BASE + (2 * T + t) * 2048 + nt * 1024}")
                E(f"v_add_f32 {V(rs[0])}, {V(rs[0])}, {V(rs[1])}")
                E(f"v_add_f32 {V(rs[2])}, {V(rs[2])}, {V(rs[3])}")
                E(f"v_add_f32 {V(rs[4])}, {V(rs[4])}, {V(rs[5])}")
                E(f"v_add_f32 {V(rs[6])}, {V(rs[6])}, {V(rs[7])}")
                E(f"v_add_f32 {V(rs[0])}, {V(rs[0])}, {V(rs[2])}")
                E(f"v_add_f32 {V(rs[4])}, {V(rs[4])}, {V(rs[6])}")
                if first[nt]:
                    E(f"v_add_f32 {V(sm[nt])}, {V(rs[0])}, {V(rs[4])}")
                    first[nt] = False
                else:
                    E(f"v_add_f32 {V(rs[0])}, {V(rs[0])}, {V(rs[4])}")
                    E(f"v_add_f32 {V(sm[nt])}, {V(sm[nt])}, {V(rs[0])}")
    E(f"v_permlane32_swap_b32 {V(sm[0])}, {V(sm[1])}")
    E(f"v_add_f32 {V(sm[0])}, {V(sm[0])}, {V(sm[1])}")
    g.barrier()
    if args.dump == "p":
        E(f"v_mov_b32 {V(126)}, {V(sm[0])}")
        dump_x(65536)
        E(f"v_mov_b32 {V(sm[0])}, {V(126)}")
    stamp()
    def p_reads(i):
        out = []
        bb = bbuf(G_V + i)
        for ks2 in range(2):
            for nt in range(2):
                def f(ks2=ks2, nt=nt):
                    off = X_BASE + ((2 * i + ks2) * 2 + nt) * 1024
                    E(f"ds_read_b128 {A(bb + (ks2 * 2 + nt) * 4, 4)}, {V(vLin)} offset:{off}")
                out.append(f)
        return out
    run(p_reads(0))
    for i in range(NG_V):
        G = G_V + i
        ab, bb = abuf(G), bbuf(G)
        mf = []
        for ks in range(2):
            for mt in range(2):
                for nt in range(2):
                    acc = V(ACC + (mt * 2 + nt) * 16, 16)
                    c = "0" if (i == 0 and ks == 0) else acc
                    mf.append(f"{M32} {acc}, {V(ab + (ks * 2 + mt) * 4, 4)}, {A(bb + (ks * 2 + nt) * 4, 4)}, {c}")
        fill = []
        if i + 1 < NG_V:
            fill += p_reads(i + 1)
            fill += a_reads(G + 1)
        interleave(mf, fill, dma_group(G + NSLOT))
    stamp()
    g.barrier()
    E(f"ds_write_b32 {V(vSTw)}, {V(sm[0])} offset:{SUMS}")
    for mt in range(2):
        for nt in range(2):
            acc = ACC + (mt * 2 + nt) * 16
            for t in range(2):
                tmp = vT + ((mt * 4 + nt * 2 + t) % 3) * 4 + 4
                for k in range(4):
                    E(f"v_cvt_pk_bf16_f32 {V(tmp + k)}, {V(acc + 8 * t + 2 * k)}, {V(acc + 8 * t + 2 * k + 1)}")
                E(f"ds_write_b128 {V(vOW if mt == 0 else vSMw)}, {V(tmp, 4)} offset:{X_BASE + nt * 2048 + t * 512}")
    run(a_reads(G_WO))
    g.barrier()
    if args.dump == "o":
        dump_x(36864)
    stamp()
    def o_reads(s):
        out = []
        bb = bbuf(s)
        for u in range(4):
            def f(u=u):
                E(f"ds_read_b128 {A(bb + u * 4, 4)}, {V(vLin)} offset:{X_BASE + (s * 4 + u) * 1024}")
            out.append(f)
        return out
    run(o_reads(0))
    for u in range(4):
        E(f"ds_read_b128 {V(vT + u * 4, 4)}, {V(vSMr)} offset:{SUMS + u * 256}")
    for s in range(8):
        G = G_WO + 2 * s
        ab, bb = abuf(s), bbuf(s)
        mf = []
        for m in range(7):
            for u in range(4):
                acc = V(ACC + (m * 4 + u) * 4, 4)
                c = "0" if s == 0 else acc
                mf.append(f"{M16} {acc}, {V(ab + m * 4, 4)}, {A(bb + u * 4, 4)}, {c}")
        fill = []
        if s == 0:
            for u in range(4):
                def f(u=u):
                    b = vT + u * 4
                    E(f"v_add_f32 {V(b)}, {V(b)}, {V(b + 1)}")
                    E(f"v_add_f32 {V(b + 2)}, {V(b + 2)}, {V(b + 3)}")
                    E(f"v_add_f32 {V(b)}, {V(b)}, {V(b + 2)}")
                    E(f"v_rcp_f32 {V(b)}, {V(b)}")
                fill.append(f)
        if s + 1 < 8:
            fill += o_reads(s + 1)
            fill += a_reads(G + 2)
        interleave(mf, fill, dma_group(G + NSLOT) + dma_group(G + 1 + NSLOT), lead=2)
    stamp()
    fl = (" " + args.stsc) if args.stsc else ""
    cnt = 0
    for m in range(7):
        for u in range(4):
            acc = ACC + (m * 4 + u) * 4
            rinv = V(vT + u * 4)
            for k in range(4):
                E(f"v_mul_f32 {V(acc + k)}, {V(acc + k)}, {rinv}")
            if PART_F32:
                E(f"buffer_store_dwordx4 {V(acc, 4)}, {V(vOut)}, {S(SRD_P, 4)}, {S(sST + u)} offen offset:{m * 64}{fl}")
            else:
                E(f"v_cvt_pk_bf16_f32 {V(acc)}, {V(acc)}, {V(acc + 1)}")
                E(f"v_cvt_pk_bf16_f32 {V(acc + 1)}, {V(acc + 2)}, {V(acc + 3)}")
                E(f"buffer_store_dwordx2 {V(acc, 2)}, {V(vOut)}, {S(SRD_P, 4)}, {S(sST + u)} offen offset:{m * 32}{fl}")
    if args.stamps:
        g.wait_vm()
        stamp()
        n = stamp_n[0]
        E(f"v_mov_b32 {V(vT)}, 0")
        E(f"v_accvgpr_read_b32 {V(vT + 3)}, {A(STAMP_A)}")
        for k in range(n):
            E(f"v_accvgpr_read_b32 {V(vT + 1)}, {A(STAMP_A + k)}")
            E(f"v_sub_u32 {V(vT + 1)}, {V(vT + 1)}, {V(vT + 3)}")
            E(f"v_cmp_eq_u32 vcc, {k}, {V(vL)}")
            E(f"v_cndmask_b32 {V(vT)}, {V(vT)}, {V(vT + 1)}, vcc")
        g.raw(f"s_getreg_b32 {S(sT0)}, hwreg(HW_REG_XCC_ID)")
        E(f"v_mov_b32 {V(vT + 1)}, {S(sT0)}")
        E(f"v_cmp_eq_u32 vcc, 62, {V(vL)}")
        E(f"v_cndmask_b32 {V(vT)}, {V(vT)}, {V(vT + 1)}, vcc")
        E(f"v_lshlrev_b32 {V(vT + 2)}, 2, v0")
        E(f"buffer_store_dword {V(vT)}, {V(vT + 2)}, {S(SRD_D, 4)}, 0 offen")
    g.raw("K1_END:")
    g.raw("s_endpgm")


def k2():
    h = Gen()
    e = h.emit
    h.raw("s_cmp_ge_u32 s2, 896")
    h.raw("s_cbranch_scc1 K2_END")
    h.raw("s_load_dwordx2 s[4:5], s[0:1], 80")
    h.raw("s_load_dwordx2 s[6:7], s[0:1], 96")
    e("s_mul_hi_u32 s3, s2, 0x4924925")
    e("s_mul_i32 s8, s3, 56")
    e("s_sub_u32 s8, s2, s8")
    e("s_lshl_b32 s8, s8, 6")
    e("v_add_u32 v1, s8, v0")
    esz = 4 if PART_F32 else 2
    e(f"v_lshlrev_b32 v2, {5 if PART_F32 else 4}, v1")
    e("s_mov_b32 s9, 0x4924925")
    e("v_mul_hi_u32 v3, v1, s9")
    e("v_mul_u32_u24 v4, 56, v3")
    e("v_sub_u32 v4, v1, v4")
    e("s_and_b32 s10, s3, 7")
    e("s_lshr_b32 s11, s3, 3")
    e("s_mul_i32 s10, s10, 114688")
    e("s_mul_i32 s11, s11, 896")
    e("s_add_u32 s10, s10, s11")
    e("v_mul_u32_u24 v3, 1792, v3")
    e("v_lshl_add_u32 v3, v4, 4, v3")
    e("v_add_u32 v3, s10, v3")
    h.raw("s_waitcnt lgkmcnt(0)")
    e(f"s_mul_i32 s12, s3, {16 * PART_BYTES}")
    e("s_add_u32 s16, s6, s12")
    e("s_addc_u32 s17, s7, 0")
    e("s_and_b32 s17, s17, 0xffff")
    e(f"s_mov_b32 s18, {16 * PART_BYTES}")
    e("s_mov_b32 s19, 0x00020000")
    e("s_mov_b32 s20, s4")
    e("s_and_b32 s21, s5, 0xffff")
    e(f"s_mov_b32 s22, {8 * 64 * 896 * 2}")
    e("s_mov_b32 s23, 0x00020000")
    for hh in range(16):
        e(f"s_mov_b32 s{24 + hh}, {hh * PART_BYTES}")
    if PART_F32:
        for hh in range(16):
            e(f"buffer_load_dwordx4 {V(8 + hh * 8, 4)}, v2, s[16:19], s{24 + hh} offen")
            e(f"buffer_load_dwordx4 {V(12 + hh * 8, 4)}, v2, s[16:19], s{24 + hh} offen offset:16")
        for hh in range(1, 16):
            for k in range(0, 8, 2):
                e(f"v_pk_add_f32 {V(8 + k, 2)}, {V(8 + k, 2)}, {V(8 + hh * 8 + k, 2)}")
        for k in range(4):
            e(f"v_cvt_pk_bf16_f32 {V(4 + k)}, {V(8 + 2 * k)}, {V(9 + 2 * k)}")
        nv = 136
    else:
        for hh in range(16):
            e(f"buffer_load_dwordx4 {V(16 + hh * 4, 4)}, v2, s[16:19], s{24 + hh} offen")
        for hh in range(16):
            for k in range(4):
                src = 16 + hh * 4 + k
                if hh == 0:
                    e(f"v_lshlrev_b32 {V(8 + 2 * k)}, 16, {V(src)}")
                    e(f"v_and_b32 {V(9 + 2 * k)}, 0xffff0000, {V(src)}")
                else:
                    e(f"v_lshlrev_b32 {V(4 + (k % 2) * 2)}, 16, {V(src)}")
                    e(f"v_and_b32 {V(5 + (k % 2) * 2)}, 0xffff0000, {V(src)}")
                    e(f"v_pk_add_f32 {V(8 + 2 * k, 2)}, {V(8 + 2 * k, 2)}, {V(4 + (k % 2) * 2, 2)}")
        for k in range(4):
            e(f"v_cvt_pk_bf16_f32 {V(4 + k)}, {V(8 + 2 * k)}, {V(9 + 2 * k)}")
        nv = 80
    e("buffer_store_dwordx4 v[4:7], v3, s[20:23], 0 offen")
    h.raw("K2_END:")
    h.raw("s_endpgm")
    return h.finish(), nv


k1()
body1 = g.finish()
nins = sum(1 for l in body1.splitlines() if l.strip() and not l.strip().startswith(';') and not l.strip().endswith(':'))
code_bytes = nins * 8
body2, nv2 = k2()

desc = lambda name, nv, acc, ns: f""".p2align 6
.amdhsa_kernel {name}
  .amdhsa_next_free_vgpr {nv}
  .amdhsa_next_free_sgpr {ns}
  .amdhsa_accum_offset {acc}
  .amdhsa_group_segment_fixed_size 0
  .amdhsa_kernarg_size 104
  .amdhsa_user_sgpr_count 2
  .amdhsa_user_sgpr_kernarg_segment_ptr 1
  .amdhsa_system_sgpr_workgroup_id_x 1
.end_amdhsa_kernel
"""
K1 = NAME + "_kernel"
K2 = "reduce_partials_kernel"
txt = HEADER
txt += f"; @launch kernel={K1} grid=(256,1,1) block=(256,1,1) lds={LDS_BYTES}\n"
if not args.nok2:
    txt += f"; @launch kernel={K2} grid=(896,1,1) block=(64,1,1) lds=0\n"
txt += f""".amdgcn_target "amdgcn-amd-amdhsa--gfx950"
.text
.globl {K1}
.p2align 8
.type {K1},@function
{K1}:
{body1}
.globl {K2}
.p2align 8
.type {K2},@function
{K2}:
{body2}
CODE_END:
.fill 64, 4, 0xbf800000
.section .rodata,"a"
{desc(K1, 512, 256, 102)}
{desc(K2, nv2, (nv2 + 3) // 4 * 4, 48)}
"""
open(args.o, "w").write(txt)
print(f"wrote {args.o}: k1 {nins} instrs")
```

```python
import sys, math, argparse
from asmgen import Gen, V, A, S

NAME = "concat_heads__gqa_block_cached__gqa_block_cached__near_ridge"
HEADER = open("cdna_kernels/" + NAME + ".s.ref").read().split("; Override launch")[0]

ap = argparse.ArgumentParser()
ap.add_argument("-o", default="k.s")
ap.add_argument("--part", default="bf16", choices=["bf16", "f32"])
ap.add_argument("--dump", default="", help="debug: dump stage (q|p|o) frags of X region to ws+64MB")
ap.add_argument("--stamps", action="store_true")
ap.add_argument("--nok2", action="store_true")
ap.add_argument("--kvnt", action="store_true")
ap.add_argument("--stsc", default="", help="cache flags for partial stores e.g. 'sc1' or 'nt'")
ap.add_argument("--nopf", action="store_true")
ap.add_argument("--kvmode", default="normal")
ap.add_argument("--nodma", action="store_true")
ap.add_argument("--noread", action="store_true")
ap.add_argument("--nomfma", action="store_true")
ap.add_argument("--rot", type=int, default=1)
ap.add_argument("--dbgtime", action="store_true")
ap.add_argument("--dshift", type=int, default=0)
ap.add_argument("--rtail", type=int, default=1)
ap.add_argument("--wnt", action="store_true")
args = ap.parse_args()

PART_F32 = args.part == "f32"
PART_BYTES = 64 * 448 * (4 if PART_F32 else 2)

X_BASE = 0
STATS = 57344
SUMS = 32768
RING0 = 65536
NSLOT = 6
RING_W = NSLOT * 4096
LDS_BYTES = RING0 + 4 * RING_W
assert LDS_BYTES <= 163840

sW, sRING, sOFF, sC = 4, 5, 6, 7
SRD_X, SRD_WQ, SRD_K, SRD_V, SRD_WO, SRD_P = 8, 12, 16, 20, 24, 28
sB, sH, sBR, sKV = 32, 33, 34, 35
sPTR = 36
sPC = 62
sT0, sT1, sT2, sT3 = 64, 65, 66, 67
sST = 68
SRD_D = 72
sTM = 76
sROT8 = 78
sRQ = 80
sRO = 88

vL = 1
vXD = 2
vWD = 4
vKD = 8
vVD = 12
vOD = 16
vRBx = 20
vRBk = 24
vTRw = 28
vTRv = 30
vTRo = 32
vLin = 39
vQW = 40
vPW = 41
vOW = 42
vSTw = 43
vSTr = 44
vSMw = 45
vSMr = 46
vOut = 47
vT = 48
ABUF = 64
ACC = 128
BBUF = 128
QREG = 0

g = Gen()
def E(text, tag=None):
    if args.noread and text.startswith("ds_read"):
        return
    if args.nomfma and text.startswith("v_mfma"):
        return
    g.emit(text, tag)

stamp_n = [0]
STAMP_A = 200
def stamp():
    if not args.stamps:
        return
    k = stamp_n[0]; stamp_n[0] += 1
    g.raw(f"s_memtime {S(sTM, 2)}")
    g.raw("s_waitcnt lgkmcnt(0)")
    g.lg = []
    E(f"v_accvgpr_write_b32 {A(STAMP_A + k)}, {S(sTM)}")


def prologue():
    g.raw("s_cmp_ge_u32 s2, 256")
    g.raw("s_cbranch_scc1 K1_END")
    if args.dbgtime:
        g.raw("s_memtime s[96:97]")
        g.raw("s_memrealtime s[98:99]")
    g.raw(f"s_load_dwordx16 {S(sPTR, 16)}, s[0:1], 0")
    g.raw(f"s_load_dwordx8 {S(sPTR + 16, 8)}, s[0:1], 64")
    g.raw(f"s_load_dwordx2 {S(sPTR + 24, 2)}, s[0:1], 96")
    if not args.nopf:
        E(f"s_getpc_b64 {S(sPC, 2)}")
        g.raw("K1_PC:")
        E(f"v_lshlrev_b32 {V(vT)}, 7, v0")
        E(f"v_min_u32 {V(vT + 4)}, CODE_END-K1_PC-4, {V(vT)}")
        E(f"global_load_dword {V(vT + 1)}, {V(vT + 4)}, {S(sPC, 2)}", tag="pf")
        E(f"v_add_u32 {V(vT)}, 0x8000, {V(vT)}")
        E(f"v_min_u32 {V(vT + 4)}, CODE_END-K1_PC-4, {V(vT)}")
        E(f"global_load_dword {V(vT + 2)}, {V(vT + 4)}, {S(sPC, 2)}", tag="pf")
    E(f"v_and_b32 {V(vL)}, 63, v0")
    E(f"v_lshrrev_b32 {V(vT + 3)}, 6, v0")
    E(f"v_readfirstlane_b32 {S(sW)}, {V(vT + 3)}")
    E(f"s_and_b32 {S(sT0)}, s2, 7")
    E(f"s_lshr_b32 {S(sT1)}, s2, 3")
    E(f"s_lshr_b32 {S(sT2)}, {S(sT1)}, 4")
    E(f"s_lshl_b32 {S(sT0)}, {S(sT0)}, 1")
    E(f"s_add_u32 {S(sT0)}, {S(sT0)}, {S(sT2)}")
    E(f"s_lshr_b32 {S(sBR)}, {S(sT0)}, 3")
    E(f"s_and_b32 {S(sKV)}, {S(sT0)}, 7")
    E(f"s_lshr_b32 {S(sB)}, {S(sT1)}, 1")
    E(f"s_and_b32 {S(sB)}, {S(sB)}, 7")
    E(f"s_and_b32 {S(sT2)}, {S(sT1)}, 1")
    E(f"s_lshl_b32 {S(sH)}, {S(sKV)}, 1")
    E(f"s_add_u32 {S(sH)}, {S(sH)}, {S(sT2)}")
    E(f"s_mul_i32 {S(sRING)}, {S(sW)}, {RING_W}")
    E(f"s_add_u32 {S(sRING)}, {S(sRING)}, {RING0}")
    E(f"s_mov_b32 {S(sC)}, 0x{f32bits(math.log2(math.e) / 16.0):08x}")
    E(f"s_min_u32 {S(sT0)}, {S(sB)}, 6" if args.rot else f"s_mov_b32 {S(sT0)}, 0")
    if args.rot:
        E(f"s_cmp_eq_u32 {S(sB)}, 7")
        E(f"s_cselect_b32 {S(sT0)}, 3, {S(sT0)}")
    for i in range(7):
        E(f"s_add_u32 {S(sT1)}, {S(sT0)}, {i}")
        E(f"s_sub_u32 {S(sT2)}, {S(sT1)}, 7")
        E(f"s_cmp_ge_u32 {S(sT1)}, 7")
        E(f"s_cselect_b32 {S(sT1)}, {S(sT2)}, {S(sT1)}")
        E(f"s_lshl_b32 {S(sRQ + i)}, {S(sT1)}, 19")
    E(f"s_mov_b32 {S(sROT8)}, {S(sB)}" if args.rot else f"s_mov_b32 {S(sROT8)}, 0")
    for i in range(8):
        E(f"s_add_u32 {S(sT1)}, {S(sROT8)}, {i}")
        E(f"s_and_b32 {S(sT1)}, {S(sT1)}, 7")
        E(f"s_mul_i32 {S(sRO + i)}, {S(sT1)}, 28672")
    lane_consts()
    g.raw("s_waitcnt lgkmcnt(0)")
    E(f"s_cmp_eq_u32 {S(sBR)}, 0")
    for i in range(0, 10, 2):
        E(f"s_cselect_b64 {S(sPTR + i, 2)}, {S(sPTR + i, 2)}, {S(sPTR + 10 + i, 2)}")
    def srd(base, ptr, off_sreg, nrec):
        E(f"s_add_u32 {S(base)}, {S(ptr)}, {S(off_sreg)}")
        E(f"s_addc_u32 {S(base + 1)}, {S(ptr + 1)}, 0")
        E(f"s_and_b32 {S(base + 1)}, {S(base + 1)}, 0xffff")
        if isinstance(nrec, int):
            E(f"s_mov_b32 {S(base + 2)}, {nrec}")
        else:
            E(f"s_sub_u32 {S(base + 2)}, {nrec[0]}, {S(nrec[1])}")
        E(f"s_mov_b32 {S(base + 3)}, 0x00020000")
    E(f"s_mul_i32 {S(sT0)}, {S(sB)}, 57344")
    srd(SRD_X, sPTR + 0, sT0, 57344)
    E(f"s_lshl_b32 {S(sT0)}, {S(sH)}, 9")
    srd(SRD_WQ, sPTR + 6, sT0, (448 * 8192, sT0))
    E(f"s_lshl_b32 {S(sT0)}, {S(sB)}, 3")
    E(f"s_add_u32 {S(sT0)}, {S(sT0)}, {S(sKV)}")
    E(f"s_lshl_b32 {S(sT0)}, {S(sT0)}, 18")
    if args.kvmode == "same":
        E(f"s_lshl_b32 {S(sT0)}, {S(sKV)}, 18")
    if args.kvmode == "swapkv":
        E(f"s_and_b32 {S(sT2)}, {S(sH)}, 1")
        E(f"s_cmp_eq_u32 {S(sT2)}, 0")
        E(f"s_mov_b64 {S(sPC, 2)}, {S(sPTR + 2, 2)}")
        E(f"s_cselect_b64 {S(sPTR + 2, 2)}, {S(sPTR + 2, 2)}, {S(sPTR + 4, 2)}")
        E(f"s_cselect_b64 {S(sPTR + 4, 2)}, {S(sPTR + 4, 2)}, {S(sPC, 2)}")
    srd(SRD_K, sPTR + 2, sT0, 262144)
    srd(SRD_V, sPTR + 4, sT0, 262144)
    E(f"s_mul_i32 {S(sT0)}, {S(sH)}, 229376")
    srd(SRD_WO, sPTR + 8, sT0, 229376)
    E(f"s_lshl_b32 {S(sT0)}, {S(sBR)}, 3")
    E(f"s_add_u32 {S(sT0)}, {S(sT0)}, {S(sB)}")
    E(f"s_lshl_b32 {S(sT0)}, {S(sT0)}, 4")
    E(f"s_add_u32 {S(sT0)}, {S(sT0)}, {S(sH)}")
    E(f"s_mul_i32 {S(sT1)}, {S(sT0)}, {PART_BYTES}")
    srd(SRD_P, sPTR + 24, sT1, PART_BYTES)
    if args.dump or args.stamps:
        E(f"s_lshl_b32 {S(sT1)}, {S(sT0)}, 16")
        E(f"s_add_u32 {S(sT1)}, {S(sT1)}, {64 << 20}")
        srd(SRD_D, sPTR + 24, sT1, 65536)
    rowb = 448 * (4 if PART_F32 else 2)
    for u in range(4):
        E(f"s_mov_b32 {S(sST + u)}, {u * 16 * rowb}")


def f32bits(x):
    import struct
    return struct.unpack("<I", struct.pack("<f", x))[0]


def lane_consts():
    t = [vT + 4 + i for i in range(10)]
    l = V(vL)
    l3, l7, l4, l35 = t[0], t[1], t[2], t[3]
    E(f"v_lshrrev_b32 {V(l3)}, 3, {l}")
    E(f"v_and_b32 {V(l7)}, 7, {l}")
    E(f"v_lshrrev_b32 {V(l4)}, 4, {l}")
    E(f"s_lshl_b32 {S(sT3)}, {S(sW)}, 7")
    E(f"s_mul_i32 {S(sT0)}, {S(sW)}, {16 * 896}")
    E(f"v_mul_u32_u24 {V(t[4])}, 896, {V(l3)}")
    E(f"v_add_u32 {V(t[4])}, {S(sT0)}, {V(t[4])}")
    E(f"v_xor_b32 {V(t[5])}, {V(l7)}, {V(l4)}")
    E(f"v_lshl_add_u32 {V(vXD)}, {V(t[5])}, 4, {V(t[4])}")
    E(f"v_xor_b32 {V(t[6])}, 4, {V(t[5])}")
    E(f"v_lshl_add_u32 {V(vXD + 1)}, {V(t[6])}, 4, {V(t[4])}")
    E(f"v_add_u32 {V(vXD + 1)}, {8 * 896}, {V(vXD + 1)}")
    E(f"s_lshl_b32 {S(sT0)}, {S(sW)}, 16")
    E(f"v_lshl_add_u32 {V(t[4])}, {V(l3)}, 9, {S(sT0)}")
    for j in range(4):
        E(f"v_lshl_add_u32 {V(vKD + j)}, {V(t[5] if j % 2 == 0 else t[6])}, 4, {V(t[4])}")
        if j:
            E(f"v_add_u32 {V(vKD + j)}, {j * 3072}, {V(vKD + j)}")
    E(f"v_and_b32 {V(t[7])}, 1, {V(l4)}")
    E(f"v_lshlrev_b32 {V(t[7])}, 2, {V(t[7])}")
    E(f"v_xor_b32 {V(t[7])}, {V(l7)}, {V(t[7])}")
    E(f"v_lshl_add_u32 {V(t[7])}, {V(t[7])}, 4, {S(sT3)}")
    E(f"v_lshl_add_u32 {V(vWD)}, {V(l3)}, 13, {V(t[7])}")
    E(f"v_lshl_add_u32 {V(vVD)}, {V(l3)}, 9, {V(t[7])}")
    for j in range(1, 4):
        E(f"v_add_u32 {V(vWD + j)}, {j * (65536 - 1024)}, {V(vWD)}")
        E(f"v_add_u32 {V(vVD + j)}, {j * 3072}, {V(vVD)}")
    E(f"v_bfe_u32 {V(t[4])}, {l}, 1, 3")
    E(f"v_xor_b32 {V(t[4])}, {V(t[4])}, {V(l4)}")
    E(f"v_xor_b32 {V(t[5])}, 4, {V(t[4])}")
    E(f"v_min_u32 {V(t[4])}, 6, {V(t[4])}")
    E(f"v_min_u32 {V(t[5])}, 6, {V(t[5])}")
    E(f"v_and_b32 {V(t[6])}, 1, {l}")
    E(f"v_lshlrev_b32 {V(t[6])}, 4, {V(t[6])}")
    E(f"v_mul_u32_u24 {V(t[7])}, 896, {V(l4)}")
    E(f"s_mul_i32 {S(sT0)}, {S(sW)}, 224")
    E(f"v_add3_u32 {V(t[6])}, {V(t[6])}, {V(t[7])}, {S(sT0)}")
    for j in range(4):
        E(f"v_lshl_add_u32 {V(vOD + j)}, {V(t[4] if j < 2 else t[5])}, 5, {V(t[6])}")
        if j:
            E(f"v_add_u32 {V(vOD + j)}, {j * (3584 - 1024)}, {V(vOD + j)}")
    n, hf = t[4], t[5]
    E(f"v_and_b32 {V(n)}, 31, {l}")
    E(f"v_lshrrev_b32 {V(hf)}, 5, {l}")
    E(f"v_lshrrev_b32 {V(t[6])}, 3, {V(n)}")
    E(f"v_lshlrev_b32 {V(t[6])}, 10, {V(t[6])}")
    E(f"v_lshl_add_u32 {V(t[6])}, {V(l7)}, 7, {V(t[6])}")
    E(f"v_bfe_u32 {V(t[7])}, {V(n)}, 1, 3")
    E(f"v_xor_b32 {V(t[7])}, {V(t[7])}, {V(hf)}")
    for i in range(4):
        E(f"v_xor_b32 {V(t[8])}, {2 * i}, {V(t[7])}")
        E(f"v_lshl_add_u32 {V(vRBx + i)}, {V(t[8])}, 4, {V(t[6])}")
        E(f"v_add_u32 {V(vRBk + i)}, {S(sRING)}, {V(vRBx + i)}")
    r, c = t[6], t[7]
    E(f"v_bfe_u32 {V(r)}, {l}, 2, 2")
    E(f"v_and_b32 {V(c)}, 3, {l}")
    E(f"v_lshlrev_b32 {V(t[8])}, 7, {V(r)}")
    E(f"v_lshrrev_b32 {V(t[9])}, 1, {V(r)}")
    E(f"v_lshl_add_u32 {V(t[8])}, {V(t[9])}, 6, {V(t[8])}")
    E(f"v_and_b32 {V(t[9])}, 1, {V(l4)}")
    E(f"v_lshl_add_u32 {V(t[8])}, {V(t[9])}, 5, {V(t[8])}")
    E(f"v_and_b32 {V(t[9])}, 1, {V(c)}")
    E(f"v_lshl_add_u32 {V(t[8])}, {V(t[9])}, 4, {V(t[8])}")
    E(f"v_lshrrev_b32 {V(t[9])}, 1, {V(c)}")
    E(f"v_lshl_add_u32 {V(t[8])}, {V(t[9])}, 3, {V(t[8])}")
    E(f"v_add_u32 {V(t[8])}, {S(sRING)}, {V(t[8])}")
    E(f"v_lshl_add_u32 {V(vTRw)}, {V(hf)}, 10, {V(t[8])}")
    E(f"v_xor_b32 {V(vTRw + 1)}, 64, {V(vTRw)}")
    E(f"v_lshl_add_u32 {V(vTRv)}, {V(hf)}, 9, {V(t[8])}")
    E(f"v_xor_b32 {V(vTRv + 1)}, 64, {V(vTRv)}")
    E(f"v_lshlrev_b32 {V(t[8])}, 11, {V(l4)}")
    E(f"v_lshl_add_u32 {V(t[8])}, {V(r)}, 8, {V(t[8])}")
    E(f"v_lshl_add_u32 {V(t[8])}, {V(c)}, 3, {V(t[8])}")
    E(f"v_add_u32 {V(t[8])}, {S(sRING)}, {V(t[8])}")
    E(f"v_and_b32 {V(t[9])}, 1, {V(l4)}")
    E(f"v_lshl_or_b32 {V(t[9])}, {V(t[9])}, 2, {V(r)}")
    E(f"v_lshl_add_u32 {V(vTRo)}, {V(t[9])}, 5, {V(t[8])}")
    for m in range(1, 7):
        E(f"v_xor_b32 {V(vTRo + m)}, {m * 32}, {V(vTRo)}")
    E(f"v_lshlrev_b32 {V(vLin)}, 4, {l}")
    E(f"s_lshl_b32 {S(sT0)}, {S(sW)}, 13")
    E(f"v_add_u32 {V(vQW)}, {S(sT0)}, {V(vLin)}")
    E(f"s_lshl_b32 {S(sT1)}, {S(sW)}, 14")
    E(f"v_add_u32 {V(vPW)}, {S(sT1)}, {V(vLin)}")
    E(f"v_lshrrev_b32 {V(t[8])}, 4, {V(n)}")
    E(f"v_lshlrev_b32 {V(t[8])}, 10, {V(t[8])}")
    E(f"v_lshl_add_u32 {V(t[8])}, {V(hf)}, 8, {V(t[8])}")
    E(f"v_and_b32 {V(t[9])}, 15, {l}")
    E(f"v_lshl_add_u32 {V(t[8])}, {V(t[9])}, 4, {V(t[8])}")
    for mt in range(2):
        E(f"s_lshl_b32 {S(sT1)}, {S(sW)}, 1")
        E(f"s_add_u32 {S(sT1)}, {S(sT1)}, {8 + mt}")
        E(f"s_sub_u32 {S(sT1)}, {S(sT1)}, {S(sROT8)}")
        E(f"s_and_b32 {S(sT1)}, {S(sT1)}, 7")
        E(f"s_lshl_b32 {S(sT1)}, {S(sT1)}, 12")
        E(f"v_add_u32 {V(vOW if mt == 0 else vSMw)}, {S(sT1)}, {V(t[8])}")
    E(f"s_lshl_b32 {S(sT0)}, {S(sW)}, 2")
    E(f"v_add_u32 {V(vSTw)}, {S(sT0)}, {V(vLin)}")
    E(f"v_lshlrev_b32 {V(vSTr)}, 4, {V(n)}")
    E(f"v_lshlrev_b32 {V(vSMr)}, 4, {V(t[9])}")
    esz = 4 if PART_F32 else 2
    E(f"v_mul_u32_u24 {V(t[8])}, {448 * esz}, {V(t[9])}")
    E(f"v_lshl_add_u32 {V(t[8])}, {V(l4)}, {4 if PART_F32 else 3}, {V(t[8])}")
    E(f"s_mul_i32 {S(sT0)}, {S(sW)}, {112 * esz}")
    E(f"v_add_u32 {V(vOut)}, {S(sT0)}, {V(t[8])}")


NG_WQ, NG_K, NG_V, NG_WO = 14, 16, 16, 16
G_K = NG_WQ
G_V = G_K + NG_K
G_WO = G_V + NG_V
NG = G_WO + NG_WO


def dma_group(G):
    if G >= NG or (args.nodma and G >= NSLOT):
        return []
    slot = G % NSLOT
    if G < G_K:
        srd, vo, so, fl = SRD_WQ, vWD, (sRQ + G // 2, (G % 2) * 262144), (" nt" if args.wnt else "")
    elif G < G_V:
        i = G - G_K
        srd, vo, so, fl = SRD_K, vKD, (i // 4) * 16384 + (i % 4) * 128, (" nt" if args.kvnt else "")
    elif G < G_WO:
        srd, vo, so, fl = SRD_V, vVD, (G - G_V) * 16384, (" nt" if args.kvnt else "")
    else:
        srd, vo, so, fl = SRD_WO, vOD, (sRO + (G - G_WO) // 2, ((G - G_WO) % 2) * 14336), (" nt" if args.wnt else "")
    out = []
    def setup():
        if G >= NSLOT:
            g.wait_ds(("A", G - NSLOT))
        E(f"s_add_u32 m0, {S(sRING)}, {slot * 4096}")
        if isinstance(so, tuple):
            E(f"s_add_u32 {S(sOFF)}, {S(so[0])}, {so[1]}")
        else:
            E(f"s_mov_b32 {S(sOFF)}, {so}")
    setup.is_setup = True
    out.append(setup)
    for j in range(4):
        def f(j=j):
            off = f" offset:{j * 1024}" if j else ""
            E(f"buffer_load_dwordx4 {V(vo + j)}, {S(srd, 4)}, {S(sOFF)} offen{off}{fl} lds", tag=("G", G))
        out.append(f)
    return out


def dma_x():
    E(f"s_lshl_b32 {S(sT0)}, {S(sW)}, 11")
    for cg in range(7):
        E(f"s_lshr_b32 {S(sOFF)}, {S(sRQ + cg)}, 12")
        for par in range(2):
            E(f"s_add_u32 m0, {S(sT0)}, {X_BASE + (cg * 8 + par) * 1024}")
            E(f"buffer_load_dwordx4 {V(vXD + par)}, {S(SRD_X, 4)}, {S(sOFF)} offen lds", tag="X")


def abuf(G):
    return ABUF + (G % 2) * 28


def bbuf(G):
    return BBUF + (G % 2) * 16


def a_reads(G):
    out = []
    slot = G % NSLOT
    so = slot * 4096
    tag = ("A", G)
    if G < G_K or G_V <= G < G_WO:
        isw = G < G_K
        base = vTRw if isw else vTRv
        ab = abuf(G)
        first = True
        for ks in range(2):
            for mt in range(2):
                for r2 in range(2):
                    off = so + ks * 2048 + r2 * (512 if isw else 1024)
                    dst = ab + (ks * 2 + mt) * 4 + r2 * 2
                    def f(dst=dst, mt=mt, off=off, first=first):
                        if first:
                            g.wait_vm(("G", G))
                        E(f"ds_read_b64_tr_b16 {V(dst, 2)}, {V(base + mt)} offset:{off}", tag=tag)
                    out.append(f)
                    first = False
    elif G < G_V:
        ab = abuf(G)
        for i in range(4):
            def f(i=i):
                if i == 0:
                    g.wait_vm(("G", G))
                E(f"ds_read_b128 {V(ab + i * 4, 4)}, {V(vRBk + i)} offset:{so}", tag=tag)
            out.append(f)
    else:
        assert (G - G_WO) % 2 == 0 and slot % 2 == 0
        ab = abuf((G - G_WO) // 2)
        first = True
        for m in range(7):
            for r2 in range(2):
                def f(m=m, r2=r2, first=first):
                    if first:
                        g.wait_vm(("G", G + 1))
                    E(f"ds_read_b64_tr_b16 {V(ab + m * 4 + r2 * 2, 2)}, {V(vTRo + m)} offset:{so + r2 * 1024}",
                      tag=[("A", G), ("A", G + 1)])
                out.append(f)
                first = False
    return out


def interleave(mfmas, reads, dmas, lead=1):
    n = len(mfmas)
    gaps = [[] for _ in range(n)]
    units = []
    k = 0
    while k < len(dmas):
        if getattr(dmas[k], "is_setup", False):
            units.append([dmas[k], dmas[k + 1]]); k += 2
        else:
            units.append([dmas[k]]); k += 1
    dgaps = set()
    for i, u in enumerate(units):
        gi = (i * n) // max(len(units), 1) + args.dshift
        gi = min(gi, n - 1)
        gaps[gi] += u
        dgaps.add(gi)
    free = [i for i in range(lead - 1, n - args.rtail) if i not in dgaps] or [n - 1]
    for i, r in enumerate(reads):
        gaps[free[(i * len(free)) // len(reads)]].append(r)
    for k, m in enumerate(mfmas):
        E(m)
        for f in gaps[k]:
            f()


def run(fs):
    for f in fs:
        f()


def dump_x(nbytes):
    g.barrier()
    E(f"v_lshlrev_b32 {V(vT)}, 4, v0")
    for k in range(nbytes // 4096):
        E(f"ds_read_b128 {V(vT + 4, 4)}, {V(vT)} offset:{k * 4096}")
        E(f"s_mov_b32 {S(sT0)}, {k * 4096}")
        E(f"buffer_store_dwordx4 {V(vT + 4, 4)}, {V(vT)}, {S(SRD_D, 4)}, {S(sT0)} offen", tag="dbg")
        g.wait_vm("dbg")
    g.barrier()


M32 = "v_mfma_f32_32x32x16_bf16"
M16 = "v_mfma_f32_16x16x32_bf16"


def k1():
    prologue()
    stamp()
    dma_x()
    for G in range(NSLOT):
        run(dma_group(G))
    g.wait_vm("X")
    g.raw("s_barrier")
    stamp()
    def xb_reads(G):
        out = []
        bb = bbuf(G)
        for ks2 in range(2):
            ks = 2 * G + ks2
            for nt in range(2):
                def f(ks=ks, nt=nt, ks2=ks2):
                    off = X_BASE + ((ks >> 2) * 8 + 4 * nt) * 1024
                    E(f"ds_read_b128 {A(bb + (ks2 * 2 + nt) * 4, 4)}, {V(vRBx + (ks & 3))} offset:{off}")
                out.append(f)
        return out
    run(xb_reads(0))
    run(a_reads(0))
    for G in range(NG_WQ):
        ab, bb = abuf(G), bbuf(G)
        mf = []
        for ks in range(2):
            for mt in range(2):
                for nt in range(2):
                    acc = V(ACC + (mt * 2 + nt) * 16, 16)
                    c = "0" if (G == 0 and ks == 0) else acc
                    mf.append(f"{M32} {acc}, {V(ab + (ks * 2 + mt) * 4, 4)}, {A(bb + (ks * 2 + nt) * 4, 4)}, {c}")
        fill = []
        if G + 1 < NG_WQ:
            fill += xb_reads(G + 1)
        fill += a_reads(G + 1)
        interleave(mf, fill, dma_group(G + NSLOT))
    stamp()
    g.barrier()
    for mt in range(2):
        for nt in range(2):
            acc = ACC + (mt * 2 + nt) * 16
            for t in range(2):
                tmp = vT + ((mt * 4 + nt * 2 + t) % 4) * 4
                for k in range(4):
                    E(f"v_cvt_pk_bf16_f32 {V(tmp + k)}, {V(acc + 8 * t + 2 * k)}, {V(acc + 8 * t + 2 * k + 1)}")
                E(f"ds_write_b128 {V(vQW)}, {V(tmp, 4)} offset:{X_BASE + (2 * mt + t) * 2048 + nt * 1024}")
    g.barrier()
    if args.dump == "q":
        dump_x(32768)
    stamp()
    def q_reads(cg):
        out = []
        for i in range(4):
            ks = cg * 4 + i
            for nt in range(2):
                def f(ks=ks, nt=nt):
                    E(f"ds_read_b128 {A(QREG + (ks * 2 + nt) * 4, 4)}, {V(vLin)} offset:{X_BASE + (ks * 2 + nt) * 1024}")
                out.append(f)
        return out
    run(q_reads(0))
    for i in range(NG_K):
        G = G_K + i
        T, cg = i // 4, i % 4
        ab = abuf(G)
        mf = []
        for k4 in range(4):
            ks = cg * 4 + k4
            for nt in range(2):
                acc = V(ACC + (T * 2 + nt) * 16, 16)
                c = "0" if ks == 0 else acc
                mf.append(f"{M32} {acc}, {V(ab + k4 * 4, 4)}, {A(QREG + (ks * 2 + nt) * 4, 4)}, {c}")
        fill = []
        if T == 0 and cg < 3:
            fill += q_reads(cg + 1)
        fill += a_reads(G + 1)
        interleave(mf, fill, dma_group(G + NSLOT))
    stamp()
    def Sreg(T, nt, r):
        return ACC + (T * 2 + nt) * 16 + r
    mx = [vT, vT + 1]
    for nt in range(2):
        vals = [Sreg(T, nt, r) for T in range(4) for r in range(16)]
        ch = [vT + 4 + nt * 4 + k for k in range(4)]
        for k in range(4):
            vs = vals[k * 16:(k + 1) * 16]
            E(f"v_max3_f32 {V(ch[k])}, {V(vs[0])}, {V(vs[1])}, {V(vs[2])}")
        for step in range(3, 15, 2):
            for k in range(4):
                vs = vals[k * 16:(k + 1) * 16]
                E(f"v_max3_f32 {V(ch[k])}, {V(ch[k])}, {V(vs[step])}, {V(vs[step + 1])}")
        for k in range(4):
            vs = vals[k * 16:(k + 1) * 16]
            E(f"v_max_f32 {V(ch[k])}, {V(ch[k])}, {V(vs[15])}")
        E(f"v_max3_f32 {V(mx[nt])}, {V(ch[0])}, {V(ch[1])}, {V(ch[2])}")
        E(f"v_max_f32 {V(mx[nt])}, {V(mx[nt])}, {V(ch[3])}")
    E(f"v_permlane32_swap_b32 {V(mx[0])}, {V(mx[1])}")
    E(f"v_max_f32 {V(mx[0])}, {V(mx[0])}, {V(mx[1])}")
    E(f"ds_write_b32 {V(vSTw)}, {V(mx[0])} offset:{STATS}")
    g.barrier()
    E(f"ds_read_b128 {V(vT + 4, 4)}, {V(vSTr)} offset:{STATS}")
    E(f"ds_read_b128 {V(vT + 8, 4)}, {V(vSTr)} offset:{STATS + 512}")
    for nt in range(2):
        b = vT + 4 + nt * 4
        E(f"v_max3_f32 {V(mx[nt])}, {V(b)}, {V(b + 1)}, {V(b + 2)}")
        E(f"v_max_f32 {V(mx[nt])}, {V(mx[nt])}, {V(b + 3)}")
        E(f"v_mul_f32 {V(mx[nt])}, {S(sC)}, {V(mx[nt])}")
    g.barrier()
    sm = [vT + 2, vT + 3]
    first = [True, True]
    for T in range(4):
        for nt in range(2):
            for t in range(2):
                rs = [Sreg(T, nt, 8 * t + e) for e in range(8)]
                for r in rs:
                    E(f"v_fma_f32 {V(r)}, {V(r)}, {S(sC)}, -{V(mx[nt])}")
                for r in rs:
                    E(f"v_exp_f32 {V(r)}, {V(r)}")
                tmp = vT + 4 + ((T * 4 + nt * 2 + t) % 3) * 4
                for k in range(4):
                    E(f"v_cvt_pk_bf16_f32 {V(tmp + k)}, {V(rs[2 * k])}, {V(rs[2 * k + 1])}")
                E(f"ds_write_b128 {V(vPW)}, {V(tmp, 4)} offset:{X_BASE + (2 * T + t) * 2048 + nt * 1024}")
                E(f"v_add_f32 {V(rs[0])}, {V(rs[0])}, {V(rs[1])}")
                E(f"v_add_f32 {V(rs[2])}, {V(rs[2])}, {V(rs[3])}")
                E(f"v_add_f32 {V(rs[4])}, {V(rs[4])}, {V(rs[5])}")
                E(f"v_add_f32 {V(rs[6])}, {V(rs[6])}, {V(rs[7])}")
                E(f"v_add_f32 {V(rs[0])}, {V(rs[0])}, {V(rs[2])}")
                E(f"v_add_f32 {V(rs[4])}, {V(rs[4])}, {V(rs[6])}")
                if first[nt]:
                    E(f"v_add_f32 {V(sm[nt])}, {V(rs[0])}, {V(rs[4])}")
                    first[nt] = False
                else:
                    E(f"v_add_f32 {V(rs[0])}, {V(rs[0])}, {V(rs[4])}")
                    E(f"v_add_f32 {V(sm[nt])}, {V(sm[nt])}, {V(rs[0])}")
    E(f"v_permlane32_swap_b32 {V(sm[0])}, {V(sm[1])}")
    E(f"v_add_f32 {V(sm[0])}, {V(sm[0])}, {V(sm[1])}")
    g.barrier()
    if args.dump == "p":
        E(f"v_mov_b32 {V(126)}, {V(sm[0])}")
        dump_x(65536)
        E(f"v_mov_b32 {V(sm[0])}, {V(126)}")
    stamp()
    def p_reads(i):
        out = []
        bb = bbuf(G_V + i)
        for ks2 in range(2):
            for nt in range(2):
                def f(ks2=ks2, nt=nt):
                    off = X_BASE + ((2 * i + ks2) * 2 + nt) * 1024
                    E(f"ds_read_b128 {A(bb + (ks2 * 2 + nt) * 4, 4)}, {V(vLin)} offset:{off}")
                out.append(f)
        return out
    run(p_reads(0))
    for i in range(NG_V):
        G = G_V + i
        ab, bb = abuf(G), bbuf(G)
        mf = []
        for ks in range(2):
            for mt in range(2):
                for nt in range(2):
                    acc = V(ACC + (mt * 2 + nt) * 16, 16)
                    c = "0" if (i == 0 and ks == 0) else acc
                    mf.append(f"{M32} {acc}, {V(ab + (ks * 2 + mt) * 4, 4)}, {A(bb + (ks * 2 + nt) * 4, 4)}, {c}")
        fill = []
        if i + 1 < NG_V:
            fill += p_reads(i + 1)
            fill += a_reads(G + 1)
        interleave(mf, fill, dma_group(G + NSLOT))
    stamp()
    g.barrier()
    E(f"ds_write_b32 {V(vSTw)}, {V(sm[0])} offset:{SUMS}")
    for mt in range(2):
        for nt in range(2):
            acc = ACC + (mt * 2 + nt) * 16
            for t in range(2):
                tmp = vT + ((mt * 4 + nt * 2 + t) % 3) * 4 + 4
                for k in range(4):
                    E(f"v_cvt_pk_bf16_f32 {V(tmp + k)}, {V(acc + 8 * t + 2 * k)}, {V(acc + 8 * t + 2 * k + 1)}")
                E(f"ds_write_b128 {V(vOW if mt == 0 else vSMw)}, {V(tmp, 4)} offset:{X_BASE + nt * 2048 + t * 512}")
    run(a_reads(G_WO))
    g.barrier()
    if args.dump == "o":
        dump_x(36864)
    stamp()
    def o_reads(s):
        out = []
        bb = bbuf(s)
        for u in range(4):
            def f(u=u):
                E(f"ds_read_b128 {A(bb + u * 4, 4)}, {V(vLin)} offset:{X_BASE + (s * 4 + u) * 1024}")
            out.append(f)
        return out
    run(o_reads(0))
    for u in range(4):
        E(f"ds_read_b128 {V(vT + u * 4, 4)}, {V(vSMr)} offset:{SUMS + u * 256}")
    for s in range(8):
        G = G_WO + 2 * s
        ab, bb = abuf(s), bbuf(s)
        mf = []
        for m in range(7):
            for u in range(4):
                acc = V(ACC + (m * 4 + u) * 4, 4)
                c = "0" if s == 0 else acc
                mf.append(f"{M16} {acc}, {V(ab + m * 4, 4)}, {A(bb + u * 4, 4)}, {c}")
        fill = []
        if s == 0:
            for u in range(4):
                def f(u=u):
                    b = vT + u * 4
                    E(f"v_add_f32 {V(b)}, {V(b)}, {V(b + 1)}")
                    E(f"v_add_f32 {V(b + 2)}, {V(b + 2)}, {V(b + 3)}")
                    E(f"v_add_f32 {V(b)}, {V(b)}, {V(b + 2)}")
                    E(f"v_rcp_f32 {V(b)}, {V(b)}")
                fill.append(f)
        if s + 1 < 8:
            fill += o_reads(s + 1)
            fill += a_reads(G + 2)
        interleave(mf, fill, dma_group(G + NSLOT) + dma_group(G + 1 + NSLOT), lead=2)
    stamp()
    fl = (" " + args.stsc) if args.stsc else ""
    cnt = 0
    for m in range(7):
        for u in range(4):
            acc = ACC + (m * 4 + u) * 4
            rinv = V(vT + u * 4)
            for k in range(4):
                E(f"v_mul_f32 {V(acc + k)}, {V(acc + k)}, {rinv}")
            if PART_F32:
                E(f"buffer_store_dwordx4 {V(acc, 4)}, {V(vOut)}, {S(SRD_P, 4)}, {S(sST + u)} offen offset:{m * 64}{fl}")
            else:
                E(f"v_cvt_pk_bf16_f32 {V(acc)}, {V(acc)}, {V(acc + 1)}")
                E(f"v_cvt_pk_bf16_f32 {V(acc + 1)}, {V(acc + 2)}, {V(acc + 3)}")
                E(f"buffer_store_dwordx2 {V(acc, 2)}, {V(vOut)}, {S(SRD_P, 4)}, {S(sST + u)} offen offset:{m * 32}{fl}")
    if args.stamps:
        g.wait_vm()
        stamp()
        n = stamp_n[0]
        E(f"v_mov_b32 {V(vT)}, 0")
        E(f"v_accvgpr_read_b32 {V(vT + 3)}, {A(STAMP_A)}")
        for k in range(n):
            E(f"v_accvgpr_read_b32 {V(vT + 1)}, {A(STAMP_A + k)}")
            E(f"v_sub_u32 {V(vT + 1)}, {V(vT + 1)}, {V(vT + 3)}")
            E(f"v_cmp_eq_u32 vcc, {k}, {V(vL)}")
            E(f"v_cndmask_b32 {V(vT)}, {V(vT)}, {V(vT + 1)}, vcc")
        g.raw(f"s_getreg_b32 {S(sT0)}, hwreg(HW_REG_XCC_ID)")
        E(f"v_mov_b32 {V(vT + 1)}, {S(sT0)}")
        E(f"v_cmp_eq_u32 vcc, 62, {V(vL)}")
        E(f"v_cndmask_b32 {V(vT)}, {V(vT)}, {V(vT + 1)}, vcc")
        E(f"v_lshlrev_b32 {V(vT + 2)}, 2, v0")
        E(f"buffer_store_dword {V(vT)}, {V(vT + 2)}, {S(SRD_D, 4)}, 0 offen")
    if args.dbgtime:
        g.wait_vm()
        g.raw("s_memtime s[88:89]")
        g.raw("s_memrealtime s[90:91]")
        g.raw("s_waitcnt lgkmcnt(0)")
        E("s_mul_hi_u32 s80, s2, 50529028")
        E("s_mul_i32 s81, s80, 85")
        E("s_cmp_eq_u32 s81, s2")
        g.raw("s_cbranch_scc0 K1_END")
        E("s_sub_u32 s88, s88, s96")
        E(f"v_mov_b32 {V(vT)}, s88")
        E(f"v_mov_b32 {V(vT + 1)}, s98")
        E(f"v_mov_b32 {V(vT + 2)}, s90")
        E(f"v_mov_b32 {V(vT + 3)}, s2")
        E("s_lshl_b32 s80, s80, 4")
        E(f"v_mov_b32 {V(vT + 4)}, s80")
        E("v_cmp_eq_u32 vcc, 0, v0")
        g.raw("s_nop 4")
        g.raw("s_and_saveexec_b64 s[82:83], vcc")
        g.raw("s_cbranch_execz K1_END")
        E(f"global_store_dwordx4 {V(vT + 4)}, {V(vT, 4)}, {S(sPTR + 22, 2)}")
    g.raw("K1_END:")
    g.raw("s_endpgm")


def k2():
    h = Gen()
    e = h.emit
    h.raw("s_cmp_ge_u32 s2, 896")
    h.raw("s_cbranch_scc1 K2_END")
    h.raw("s_load_dwordx2 s[4:5], s[0:1], 80")
    h.raw("s_load_dwordx2 s[6:7], s[0:1], 96")
    e("s_mul_hi_u32 s3, s2, 0x4924925")
    e("s_mul_i32 s8, s3, 56")
    e("s_sub_u32 s8, s2, s8")
    e("s_lshl_b32 s8, s8, 6")
    e("v_add_u32 v1, s8, v0")
    esz = 4 if PART_F32 else 2
    e(f"v_lshlrev_b32 v2, {5 if PART_F32 else 4}, v1")
    e("s_mov_b32 s9, 0x4924925")
    e("v_mul_hi_u32 v3, v1, s9")
    e("v_mul_u32_u24 v4, 56, v3")
    e("v_sub_u32 v4, v1, v4")
    e("s_and_b32 s10, s3, 7")
    e("s_lshr_b32 s11, s3, 3")
    e("s_mul_i32 s10, s10, 114688")
    e("s_mul_i32 s11, s11, 896")
    e("s_add_u32 s10, s10, s11")
    e("v_mul_u32_u24 v3, 1792, v3")
    e("v_lshl_add_u32 v3, v4, 4, v3")
    e("v_add_u32 v3, s10, v3")
    h.raw("s_waitcnt lgkmcnt(0)")
    e(f"s_mul_i32 s12, s3, {16 * PART_BYTES}")
    e("s_add_u32 s16, s6, s12")
    e("s_addc_u32 s17, s7, 0")
    e("s_and_b32 s17, s17, 0xffff")
    e(f"s_mov_b32 s18, {16 * PART_BYTES}")
    e("s_mov_b32 s19, 0x00020000")
    e("s_mov_b32 s20, s4")
    e("s_and_b32 s21, s5, 0xffff")
    e(f"s_mov_b32 s22, {8 * 64 * 896 * 2}")
    e("s_mov_b32 s23, 0x00020000")
    for hh in range(16):
        e(f"s_mov_b32 s{24 + hh}, {hh * PART_BYTES}")
    if PART_F32:
        for hh in range(16):
            e(f"buffer_load_dwordx4 {V(8 + hh * 8, 4)}, v2, s[16:19], s{24 + hh} offen")
            e(f"buffer_load_dwordx4 {V(12 + hh * 8, 4)}, v2, s[16:19], s{24 + hh} offen offset:16")
        for hh in range(1, 16):
            for k in range(0, 8, 2):
                e(f"v_pk_add_f32 {V(8 + k, 2)}, {V(8 + k, 2)}, {V(8 + hh * 8 + k, 2)}")
        for k in range(4):
            e(f"v_cvt_pk_bf16_f32 {V(4 + k)}, {V(8 + 2 * k)}, {V(9 + 2 * k)}")
        nv = 136
    else:
        for hh in range(16):
            e(f"buffer_load_dwordx4 {V(16 + hh * 4, 4)}, v2, s[16:19], s{24 + hh} offen")
        for hh in range(16):
            for k in range(4):
                src = 16 + hh * 4 + k
                if hh == 0:
                    e(f"v_lshlrev_b32 {V(8 + 2 * k)}, 16, {V(src)}")
                    e(f"v_and_b32 {V(9 + 2 * k)}, 0xffff0000, {V(src)}")
                else:
                    e(f"v_lshlrev_b32 {V(4 + (k % 2) * 2)}, 16, {V(src)}")
                    e(f"v_and_b32 {V(5 + (k % 2) * 2)}, 0xffff0000, {V(src)}")
                    e(f"v_pk_add_f32 {V(8 + 2 * k, 2)}, {V(8 + 2 * k, 2)}, {V(4 + (k % 2) * 2, 2)}")
        for k in range(4):
            e(f"v_cvt_pk_bf16_f32 {V(4 + k)}, {V(8 + 2 * k)}, {V(9 + 2 * k)}")
        nv = 80
    e("buffer_store_dwordx4 v[4:7], v3, s[20:23], 0 offen")
    h.raw("K2_END:")
    h.raw("s_endpgm")
    return h.finish(), nv


k1()
body1 = g.finish()
nins = sum(1 for l in body1.splitlines() if l.strip() and not l.strip().startswith(';') and not l.strip().endswith(':'))
code_bytes = nins * 8
body2, nv2 = k2()

desc = lambda name, nv, acc, ns: f""".p2align 6
.amdhsa_kernel {name}
  .amdhsa_next_free_vgpr {nv}
  .amdhsa_next_free_sgpr {ns}
  .amdhsa_accum_offset {acc}
  .amdhsa_group_segment_fixed_size 0
  .amdhsa_kernarg_size 104
  .amdhsa_user_sgpr_count 2
  .amdhsa_user_sgpr_kernarg_segment_ptr 1
  .amdhsa_system_sgpr_workgroup_id_x 1
.end_amdhsa_kernel
"""
K1 = NAME + "_kernel"
K2 = "reduce_partials_kernel"
txt = HEADER
txt += f"; @launch kernel={K1} grid=(256,1,1) block=(256,1,1) lds={LDS_BYTES}\n"
if not args.nok2:
    txt += f"; @launch kernel={K2} grid=(896,1,1) block=(64,1,1) lds=0\n"
txt += f""".amdgcn_target "amdgcn-amd-amdhsa--gfx950"
.text
.globl {K1}
.p2align 8
.type {K1},@function
{K1}:
{body1}
.globl {K2}
.p2align 8
.type {K2},@function
{K2}:
{body2}
CODE_END:
.fill 64, 4, 0xbf800000
.section .rodata,"a"
{desc(K1, 512, 256, 102)}
{desc(K2, nv2, (nv2 + 3) // 4 * 4, 48)}
"""
open(args.o, "w").write(txt)
print(f"wrote {args.o}: k1 {nins} instrs")
```

```python
import sys, math, argparse
from asmgen import Gen, V, A, S

NAME = "concat_heads__gqa_block_cached__gqa_block_cached__near_ridge"
HEADER = open("cdna_kernels/" + NAME + ".s.ref").read().split("; Override launch")[0]

ap = argparse.ArgumentParser()
ap.add_argument("-o", default="k.s")
ap.add_argument("--part", default="bf16", choices=["bf16", "f32"])
ap.add_argument("--dump", default="", help="debug: dump stage (q|p|o) frags of X region to ws+64MB")
ap.add_argument("--stamps", action="store_true")
ap.add_argument("--nok2", action="store_true")
ap.add_argument("--kvnt", action="store_true")
ap.add_argument("--stsc", default="", help="cache flags for partial stores e.g. 'sc1' or 'nt'")
ap.add_argument("--nopf", action="store_true")
ap.add_argument("--kvmode", default="normal")
ap.add_argument("--nodma", action="store_true")
ap.add_argument("--noread", action="store_true")
ap.add_argument("--nomfma", action="store_true")
ap.add_argument("--rot", type=int, default=1)
ap.add_argument("--dbgtime", action="store_true")
ap.add_argument("--dshift", type=int, default=0)
ap.add_argument("--rtail", type=int, default=1)
ap.add_argument("--wnt", action="store_true")
args = ap.parse_args()

PART_F32 = args.part == "f32"
PART_BYTES = 64 * 448 * (4 if PART_F32 else 2)

X_BASE = 0
STATS = 57344
SUMS = 32768
RING0 = 65536
NSLOT = 6
RING_W = NSLOT * 4096
LDS_BYTES = RING0 + 4 * RING_W
assert LDS_BYTES <= 163840

sW, sRING, sOFF, sC = 4, 5, 6, 7
SRD_X, SRD_WQ, SRD_K, SRD_V, SRD_WO, SRD_P = 8, 12, 16, 20, 24, 28
sB, sH, sBR, sKV = 32, 33, 34, 35
sPTR = 36
sPC = 62
sT0, sT1, sT2, sT3 = 64, 65, 66, 67
sST = 68
SRD_D = 72
sTM = 76
sROT8 = 78
sRQ = 80
sRO = 88

vL = 1
vXD = 2
vWD = 4
vKD = 8
vVD = 12
vOD = 16
vRBx = 20
vRBk = 24
vTRw = 28
vTRv = 30
vTRo = 32
vLin = 39
vQW = 40
vPW = 41
vOW = 42
vSTw = 43
vSTr = 44
vSMw = 45
vSMr = 46
vOut = 47
vT = 48
ABUF = 64
ACC = 128
BBUF = 128
QREG = 0

g = Gen()
def E(text, tag=None):
    if args.noread and text.startswith("ds_read"):
        return
    if args.nomfma and text.startswith("v_mfma"):
        return
    g.emit(text, tag)

stamp_n = [0]
STAMP_A = 200
def stamp():
    if not args.stamps:
        return
    k = stamp_n[0]; stamp_n[0] += 1
    g.raw(f"s_memtime {S(sTM, 2)}")
    g.raw("s_waitcnt lgkmcnt(0)")
    g.lg = []
    E(f"v_accvgpr_write_b32 {A(STAMP_A + k)}, {S(sTM)}")


def prologue():
    g.raw("s_cmp_ge_u32 s2, 256")
    g.raw("s_cbranch_scc1 K1_END")
    if args.dbgtime:
        g.raw("s_memtime s[96:97]")
        g.raw("s_memrealtime s[98:99]")
    g.raw(f"s_load_dwordx16 {S(sPTR, 16)}, s[0:1], 0")
    g.raw(f"s_load_dwordx8 {S(sPTR + 16, 8)}, s[0:1], 64")
    g.raw(f"s_load_dwordx2 {S(sPTR + 24, 2)}, s[0:1], 96")
    if not args.nopf:
        E(f"s_getpc_b64 {S(sPC, 2)}")
        g.raw("K1_PC:")
        E(f"v_lshlrev_b32 {V(vT)}, 7, v0")
        E(f"v_min_u32 {V(vT + 4)}, CODE_END-K1_PC-4, {V(vT)}")
        E(f"global_load_dword {V(vT + 1)}, {V(vT + 4)}, {S(sPC, 2)}", tag="pf")
        E(f"v_add_u32 {V(vT)}, 0x8000, {V(vT)}")
        E(f"v_min_u32 {V(vT + 4)}, CODE_END-K1_PC-4, {V(vT)}")
        E(f"global_load_dword {V(vT + 2)}, {V(vT + 4)}, {S(sPC, 2)}", tag="pf")
    E(f"v_and_b32 {V(vL)}, 63, v0")
    E(f"v_lshrrev_b32 {V(vT + 3)}, 6, v0")
    E(f"v_readfirstlane_b32 {S(sW)}, {V(vT + 3)}")
    E(f"s_and_b32 {S(sT0)}, s2, 7")
    E(f"s_lshr_b32 {S(sT1)}, s2, 3")
    E(f"s_lshr_b32 {S(sT2)}, {S(sT1)}, 4")
    E(f"s_lshl_b32 {S(sT0)}, {S(sT0)}, 1")
    E(f"s_add_u32 {S(sT0)}, {S(sT0)}, {S(sT2)}")
    E(f"s_lshr_b32 {S(sBR)}, {S(sT0)}, 3")
    E(f"s_and_b32 {S(sKV)}, {S(sT0)}, 7")
    E(f"s_lshr_b32 {S(sB)}, {S(sT1)}, 1")
    E(f"s_and_b32 {S(sB)}, {S(sB)}, 7")
    E(f"s_and_b32 {S(sT2)}, {S(sT1)}, 1")
    E(f"s_lshl_b32 {S(sH)}, {S(sKV)}, 1")
    E(f"s_add_u32 {S(sH)}, {S(sH)}, {S(sT2)}")
    E(f"s_mul_i32 {S(sRING)}, {S(sW)}, {RING_W}")
    E(f"s_add_u32 {S(sRING)}, {S(sRING)}, {RING0}")
    E(f"s_mov_b32 {S(sC)}, 0x{f32bits(math.log2(math.e) / 16.0):08x}")
    E(f"s_min_u32 {S(sT0)}, {S(sB)}, 6" if args.rot else f"s_mov_b32 {S(sT0)}, 0")
    if args.rot:
        E(f"s_cmp_eq_u32 {S(sB)}, 7")
        E(f"s_cselect_b32 {S(sT0)}, 3, {S(sT0)}")
    for i in range(7):
        E(f"s_add_u32 {S(sT1)}, {S(sT0)}, {i}")
        E(f"s_sub_u32 {S(sT2)}, {S(sT1)}, 7")
        E(f"s_cmp_ge_u32 {S(sT1)}, 7")
        E(f"s_cselect_b32 {S(sT1)}, {S(sT2)}, {S(sT1)}")
        E(f"s_lshl_b32 {S(sRQ + i)}, {S(sT1)}, 19")
    E(f"s_mov_b32 {S(sROT8)}, {S(sB)}" if args.rot else f"s_mov_b32 {S(sROT8)}, 0")
    for i in range(8):
        E(f"s_add_u32 {S(sT1)}, {S(sROT8)}, {i}")
        E(f"s_and_b32 {S(sT1)}, {S(sT1)}, 7")
        E(f"s_mul_i32 {S(sRO + i)}, {S(sT1)}, 28672")
    lane_consts()
    g.raw("s_waitcnt lgkmcnt(0)")
    E(f"s_cmp_eq_u32 {S(sBR)}, 0")
    for i in range(0, 10, 2):
        E(f"s_cselect_b64 {S(sPTR + i, 2)}, {S(sPTR + i, 2)}, {S(sPTR + 10 + i, 2)}")
    def srd(base, ptr, off_sreg, nrec):
        E(f"s_add_u32 {S(base)}, {S(ptr)}, {S(off_sreg)}")
        E(f"s_addc_u32 {S(base + 1)}, {S(ptr + 1)}, 0")
        E(f"s_and_b32 {S(base + 1)}, {S(base + 1)}, 0xffff")
        if isinstance(nrec, int):
            E(f"s_mov_b32 {S(base + 2)}, {nrec}")
        else:
            E(f"s_sub_u32 {S(base + 2)}, {nrec[0]}, {S(nrec[1])}")
        E(f"s_mov_b32 {S(base + 3)}, 0x00020000")
    E(f"s_mul_i32 {S(sT0)}, {S(sB)}, 57344")
    srd(SRD_X, sPTR + 0, sT0, 57344)
    E(f"s_lshl_b32 {S(sT0)}, {S(sH)}, 9")
    srd(SRD_WQ, sPTR + 6, sT0, (448 * 8192, sT0))
    E(f"s_lshl_b32 {S(sT0)}, {S(sB)}, 3")
    E(f"s_add_u32 {S(sT0)}, {S(sT0)}, {S(sKV)}")
    E(f"s_lshl_b32 {S(sT0)}, {S(sT0)}, 18")
    if args.kvmode == "same":
        E(f"s_lshl_b32 {S(sT0)}, {S(sKV)}, 18")
    if args.kvmode == "swapkv":
        E(f"s_and_b32 {S(sT2)}, {S(sH)}, 1")
        E(f"s_cmp_eq_u32 {S(sT2)}, 0")
        E(f"s_mov_b64 {S(sPC, 2)}, {S(sPTR + 2, 2)}")
        E(f"s_cselect_b64 {S(sPTR + 2, 2)}, {S(sPTR + 2, 2)}, {S(sPTR + 4, 2)}")
        E(f"s_cselect_b64 {S(sPTR + 4, 2)}, {S(sPTR + 4, 2)}, {S(sPC, 2)}")
    srd(SRD_K, sPTR + 2, sT0, 262144)
    srd(SRD_V, sPTR + 4, sT0, 262144)
    E(f"s_mul_i32 {S(sT0)}, {S(sH)}, 229376")
    srd(SRD_WO, sPTR + 8, sT0, 229376)
    E(f"s_lshl_b32 {S(sT0)}, {S(sBR)}, 3")
    E(f"s_add_u32 {S(sT0)}, {S(sT0)}, {S(sB)}")
    E(f"s_lshl_b32 {S(sT0)}, {S(sT0)}, 4")
    E(f"s_add_u32 {S(sT0)}, {S(sT0)}, {S(sH)}")
    E(f"s_mul_i32 {S(sT1)}, {S(sT0)}, {PART_BYTES}")
    srd(SRD_P, sPTR + 24, sT1, PART_BYTES)
    if args.dump or args.stamps:
        E(f"s_lshl_b32 {S(sT1)}, {S(sT0)}, 16")
        E(f"s_add_u32 {S(sT1)}, {S(sT1)}, {64 << 20}")
        srd(SRD_D, sPTR + 24, sT1, 65536)
    rowb = 448 * (4 if PART_F32 else 2)
    for u in range(4):
        E(f"s_mov_b32 {S(sST + u)}, {u * 16 * rowb}")


def f32bits(x):
    import struct
    return struct.unpack("<I", struct.pack("<f", x))[0]


def lane_consts():
    t = [vT + 4 + i for i in range(10)]
    l = V(vL)
    l3, l7, l4, l35 = t[0], t[1], t[2], t[3]
    E(f"v_lshrrev_b32 {V(l3)}, 3, {l}")
    E(f"v_and_b32 {V(l7)}, 7, {l}")
    E(f"v_lshrrev_b32 {V(l4)}, 4, {l}")
    E(f"s_lshl_b32 {S(sT3)}, {S(sW)}, 7")
    E(f"s_mul_i32 {S(sT0)}, {S(sW)}, {16 * 896}")
    E(f"v_mul_u32_u24 {V(t[4])}, 896, {V(l3)}")
    E(f"v_add_u32 {V(t[4])}, {S(sT0)}, {V(t[4])}")
    E(f"v_xor_b32 {V(t[5])}, {V(l7)}, {V(l4)}")
    E(f"v_lshl_add_u32 {V(vXD)}, {V(t[5])}, 4, {V(t[4])}")
    E(f"v_xor_b32 {V(t[6])}, 4, {V(t[5])}")
    E(f"v_lshl_add_u32 {V(vXD + 1)}, {V(t[6])}, 4, {V(t[4])}")
    E(f"v_add_u32 {V(vXD + 1)}, {8 * 896}, {V(vXD + 1)}")
    E(f"s_lshl_b32 {S(sT0)}, {S(sW)}, 16")
    E(f"v_lshl_add_u32 {V(t[4])}, {V(l3)}, 9, {S(sT0)}")
    for j in range(4):
        E(f"v_lshl_add_u32 {V(vKD + j)}, {V(t[5] if j % 2 == 0 else t[6])}, 4, {V(t[4])}")
        if j:
            E(f"v_add_u32 {V(vKD + j)}, {j * 3072}, {V(vKD + j)}")
    E(f"v_and_b32 {V(t[7])}, 1, {V(l4)}")
    E(f"v_lshlrev_b32 {V(t[7])}, 2, {V(t[7])}")
    E(f"v_xor_b32 {V(t[7])}, {V(l7)}, {V(t[7])}")
    E(f"v_lshl_add_u32 {V(t[7])}, {V(t[7])}, 4, {S(sT3)}")
    E(f"v_lshl_add_u32 {V(vWD)}, {V(l3)}, 13, {V(t[7])}")
    E(f"v_lshl_add_u32 {V(vVD)}, {V(l3)}, 9, {V(t[7])}")
    for j in range(1, 4):
        E(f"v_add_u32 {V(vWD + j)}, {j * (65536 - 1024)}, {V(vWD)}")
        E(f"v_add_u32 {V(vVD + j)}, {j * 3072}, {V(vVD)}")
    E(f"v_bfe_u32 {V(t[4])}, {l}, 1, 3")
    E(f"v_xor_b32 {V(t[4])}, {V(t[4])}, {V(l4)}")
    E(f"v_xor_b32 {V(t[5])}, 4, {V(t[4])}")
    E(f"v_min_u32 {V(t[4])}, 6, {V(t[4])}")
    E(f"v_min_u32 {V(t[5])}, 6, {V(t[5])}")
    E(f"v_and_b32 {V(t[6])}, 1, {l}")
    E(f"v_lshlrev_b32 {V(t[6])}, 4, {V(t[6])}")
    E(f"v_mul_u32_u24 {V(t[7])}, 896, {V(l4)}")
    E(f"s_mul_i32 {S(sT0)}, {S(sW)}, 224")
    E(f"v_add3_u32 {V(t[6])}, {V(t[6])}, {V(t[7])}, {S(sT0)}")
    for j in range(4):
        E(f"v_lshl_add_u32 {V(vOD + j)}, {V(t[4] if j < 2 else t[5])}, 5, {V(t[6])}")
        if j:
            E(f"v_add_u32 {V(vOD + j)}, {j * (3584 - 1024)}, {V(vOD + j)}")
    n, hf = t[4], t[5]
    E(f"v_and_b32 {V(n)}, 31, {l}")
    E(f"v_lshrrev_b32 {V(hf)}, 5, {l}")
    E(f"v_lshrrev_b32 {V(t[6])}, 3, {V(n)}")
    E(f"v_lshlrev_b32 {V(t[6])}, 10, {V(t[6])}")
    E(f"v_lshl_add_u32 {V(t[6])}, {V(l7)}, 7, {V(t[6])}")
    E(f"v_bfe_u32 {V(t[7])}, {V(n)}, 1, 3")
    E(f"v_xor_b32 {V(t[7])}, {V(t[7])}, {V(hf)}")
    for i in range(4):
        E(f"v_xor_b32 {V(t[8])}, {2 * i}, {V(t[7])}")
        E(f"v_lshl_add_u32 {V(vRBx + i)}, {V(t[8])}, 4, {V(t[6])}")
        E(f"v_add_u32 {V(vRBk + i)}, {S(sRING)}, {V(vRBx + i)}")
    r, c = t[6], t[7]
    E(f"v_bfe_u32 {V(r)}, {l}, 2, 2")
    E(f"v_and_b32 {V(c)}, 3, {l}")
    E(f"v_lshlrev_b32 {V(t[8])}, 7, {V(r)}")
    E(f"v_lshrrev_b32 {V(t[9])}, 1, {V(r)}")
    E(f"v_lshl_add_u32 {V(t[8])}, {V(t[9])}, 6, {V(t[8])}")
    E(f"v_and_b32 {V(t[9])}, 1, {V(l4)}")
    E(f"v_lshl_add_u32 {V(t[8])}, {V(t[9])}, 5, {V(t[8])}")
    E(f"v_and_b32 {V(t[9])}, 1, {V(c)}")
    E(f"v_lshl_add_u32 {V(t[8])}, {V(t[9])}, 4, {V(t[8])}")
    E(f"v_lshrrev_b32 {V(t[9])}, 1, {V(c)}")
    E(f"v_lshl_add_u32 {V(t[8])}, {V(t[9])}, 3, {V(t[8])}")
    E(f"v_add_u32 {V(t[8])}, {S(sRING)}, {V(t[8])}")
    E(f"v_lshl_add_u32 {V(vTRw)}, {V(hf)}, 10, {V(t[8])}")
    E(f"v_xor_b32 {V(vTRw + 1)}, 64, {V(vTRw)}")
    E(f"v_lshl_add_u32 {V(vTRv)}, {V(hf)}, 9, {V(t[8])}")
    E(f"v_xor_b32 {V(vTRv + 1)}, 64, {V(vTRv)}")
    E(f"v_lshlrev_b32 {V(t[8])}, 11, {V(l4)}")
    E(f"v_lshl_add_u32 {V(t[8])}, {V(r)}, 8, {V(t[8])}")
    E(f"v_lshl_add_u32 {V(t[8])}, {V(c)}, 3, {V(t[8])}")
    E(f"v_add_u32 {V(t[8])}, {S(sRING)}, {V(t[8])}")
    E(f"v_and_b32 {V(t[9])}, 1, {V(l4)}")
    E(f"v_lshl_or_b32 {V(t[9])}, {V(t[9])}, 2, {V(r)}")
    E(f"v_lshl_add_u32 {V(vTRo)}, {V(t[9])}, 5, {V(t[8])}")
    for m in range(1, 7):
        E(f"v_xor_b32 {V(vTRo + m)}, {m * 32}, {V(vTRo)}")
    E(f"v_lshlrev_b32 {V(vLin)}, 4, {l}")
    E(f"s_lshl_b32 {S(sT0)}, {S(sW)}, 13")
    E(f"v_add_u32 {V(vQW)}, {S(sT0)}, {V(vLin)}")
    E(f"s_lshl_b32 {S(sT1)}, {S(sW)}, 14")
    E(f"v_add_u32 {V(vPW)}, {S(sT1)}, {V(vLin)}")
    E(f"v_lshrrev_b32 {V(t[8])}, 4, {V(n)}")
    E(f"v_lshlrev_b32 {V(t[8])}, 10, {V(t[8])}")
    E(f"v_lshl_add_u32 {V(t[8])}, {V(hf)}, 8, {V(t[8])}")
    E(f"v_and_b32 {V(t[9])}, 15, {l}")
    E(f"v_lshl_add_u32 {V(t[8])}, {V(t[9])}, 4, {V(t[8])}")
    for mt in range(2):
        E(f"s_lshl_b32 {S(sT1)}, {S(sW)}, 1")
        E(f"s_add_u32 {S(sT1)}, {S(sT1)}, {8 + mt}")
        E(f"s_sub_u32 {S(sT1)}, {S(sT1)}, {S(sROT8)}")
        E(f"s_and_b32 {S(sT1)}, {S(sT1)}, 7")
        E(f"s_lshl_b32 {S(sT1)}, {S(sT1)}, 12")
        E(f"v_add_u32 {V(vOW if mt == 0 else vSMw)}, {S(sT1)}, {V(t[8])}")
    E(f"s_lshl_b32 {S(sT0)}, {S(sW)}, 2")
    E(f"v_add_u32 {V(vSTw)}, {S(sT0)}, {V(vLin)}")
    E(f"v_lshlrev_b32 {V(vSTr)}, 4, {V(n)}")
    E(f"v_lshlrev_b32 {V(vSMr)}, 4, {V(t[9])}")
    esz = 4 if PART_F32 else 2
    E(f"v_mul_u32_u24 {V(t[8])}, {448 * esz}, {V(t[9])}")
    E(f"v_lshl_add_u32 {V(t[8])}, {V(l4)}, {4 if PART_F32 else 3}, {V(t[8])}")
    E(f"s_mul_i32 {S(sT0)}, {S(sW)}, {112 * esz}")
    E(f"v_add_u32 {V(vOut)}, {S(sT0)}, {V(t[8])}")


NG_WQ, NG_K, NG_V, NG_WO = 14, 16, 16, 16
G_K = NG_WQ
G_V = G_K + NG_K
G_WO = G_V + NG_V
NG = G_WO + NG_WO


def dma_group(G):
    if G >= NG or (args.nodma and G >= NSLOT):
        return []
    slot = G % NSLOT
    if G < G_K:
        srd, vo, so, fl = SRD_WQ, vWD, (sRQ + G // 2, (G % 2) * 262144), (" nt" if args.wnt else "")
    elif G < G_V:
        i = G - G_K
        srd, vo, so, fl = SRD_K, vKD, (i // 4) * 16384 + (i % 4) * 128, (" nt" if args.kvnt else "")
    elif G < G_WO:
        srd, vo, so, fl = SRD_V, vVD, (G - G_V) * 16384, (" nt" if args.kvnt else "")
    else:
        srd, vo, so, fl = SRD_WO, vOD, (sRO + (G - G_WO) // 2, ((G - G_WO) % 2) * 14336), (" nt" if args.wnt else "")
    out = []
    def setup():
        if G >= NSLOT:
            g.wait_ds(("A", G - NSLOT))
        E(f"s_add_u32 m0, {S(sRING)}, {slot * 4096}")
        if isinstance(so, tuple):
            E(f"s_add_u32 {S(sOFF)}, {S(so[0])}, {so[1]}")
        else:
            E(f"s_mov_b32 {S(sOFF)}, {so}")
    setup.is_setup = True
    out.append(setup)
    for j in range(4):
        def f(j=j):
            off = f" offset:{j * 1024}" if j else ""
            E(f"buffer_load_dwordx4 {V(vo + j)}, {S(srd, 4)}, {S(sOFF)} offen{off}{fl} lds", tag=("G", G))
        out.append(f)
    return out


def dma_x():
    E(f"s_lshl_b32 {S(sT0)}, {S(sW)}, 11")
    for cg in range(7):
        E(f"s_lshr_b32 {S(sOFF)}, {S(sRQ + cg)}, 12")
        for par in range(2):
            E(f"s_add_u32 m0, {S(sT0)}, {X_BASE + (cg * 8 + par) * 1024}")
            E(f"buffer_load_dwordx4 {V(vXD + par)}, {S(SRD_X, 4)}, {S(sOFF)} offen lds", tag="X")


def abuf(G):
    return ABUF + (G % 2) * 28


def bbuf(G):
    return BBUF + (G % 2) * 16


def a_reads(G):
    out = []
    slot = G % NSLOT
    so = slot * 4096
    tag = ("A", G)
    if G < G_K or G_V <= G < G_WO:
        isw = G < G_K
        base = vTRw if isw else vTRv
        ab = abuf(G)
        first = True
        for ks in range(2):
            for mt in range(2):
                for r2 in range(2):
                    off = so + ks * 2048 + r2 * (512 if isw else 1024)
                    dst = ab + (ks * 2 + mt) * 4 + r2 * 2
                    def f(dst=dst, mt=mt, off=off, first=first):
                        if first:
                            g.wait_vm(("G", G))
                        E(f"ds_read_b64_tr_b16 {V(dst, 2)}, {V(base + mt)} offset:{off}", tag=tag)
                    out.append(f)
                    first = False
    elif G < G_V:
        ab = abuf(G)
        for i in range(4):
            def f(i=i):
                if i == 0:
                    g.wait_vm(("G", G))
                E(f"ds_read_b128 {V(ab + i * 4, 4)}, {V(vRBk + i)} offset:{so}", tag=tag)
            out.append(f)
    else:
        assert (G - G_WO) % 2 == 0 and slot % 2 == 0
        ab = abuf((G - G_WO) // 2)
        first = True
        for m in range(7):
            for r2 in range(2):
                def f(m=m, r2=r2, first=first):
                    if first:
                        g.wait_vm(("G", G + 1))
                    E(f"ds_read_b64_tr_b16 {V(ab + m * 4 + r2 * 2, 2)}, {V(vTRo + m)} offset:{so + r2 * 1024}",
                      tag=[("A", G), ("A", G + 1)])
                out.append(f)
                first = False
    return out


def interleave(mfmas, reads, dmas, lead=1):
    n = len(mfmas)
    gaps = [[] for _ in range(n)]
    units = []
    k = 0
    while k < len(dmas):
        if getattr(dmas[k], "is_setup", False):
            units.append([dmas[k], dmas[k + 1]]); k += 2
        else:
            units.append([dmas[k]]); k += 1
    dgaps = set()
    for i, u in enumerate(units):
        gi = (i * n) // max(len(units), 1) + args.dshift
        gi = min(gi, n - 1)
        gaps[gi] += u
        dgaps.add(gi)
    free = [i for i in range(lead - 1, n - args.rtail) if i not in dgaps] or [n - 1]
    for i, r in enumerate(reads):
        gaps[free[(i * len(free)) // len(reads)]].append(r)
    for k, m in enumerate(mfmas):
        E(m)
        for f in gaps[k]:
            f()


def run(fs):
    for f in fs:
        f()


def dump_x(nbytes):
    g.barrier()
    E(f"v_lshlrev_b32 {V(vT)}, 4, v0")
    for k in range(nbytes // 4096):
        E(f"ds_read_b128 {V(vT + 4, 4)}, {V(vT)} offset:{k * 4096}")
        E(f"s_mov_b32 {S(sT0)}, {k * 4096}")
        E(f"buffer_store_dwordx4 {V(vT + 4, 4)}, {V(vT)}, {S(SRD_D, 4)}, {S(sT0)} offen", tag="dbg")
        g.wait_vm("dbg")
    g.barrier()


M32 = "v_mfma_f32_32x32x16_bf16"
M16 = "v_mfma_f32_16x16x32_bf16"


def k1():
    prologue()
    stamp()
    dma_x()
    for G in range(NSLOT):
        run(dma_group(G))
    g.wait_vm("X")
    g.raw("s_barrier")
    stamp()
    def xb_reads(G):
        out = []
        bb = bbuf(G)
        for ks2 in range(2):
            ks = 2 * G + ks2
            for nt in range(2):
                def f(ks=ks, nt=nt, ks2=ks2):
                    off = X_BASE + ((ks >> 2) * 8 + 4 * nt) * 1024
                    E(f"ds_read_b128 {A(bb + (ks2 * 2 + nt) * 4, 4)}, {V(vRBx + (ks & 3))} offset:{off}")
                out.append(f)
        return out
    run(xb_reads(0))
    run(a_reads(0))
    for G in range(NG_WQ):
        ab, bb = abuf(G), bbuf(G)
        mf = []
        for ks in range(2):
            for mt in range(2):
                for nt in range(2):
                    acc = V(ACC + (mt * 2 + nt) * 16, 16)
                    c = "0" if (G == 0 and ks == 0) else acc
                    mf.append(f"{M32} {acc}, {V(ab + (ks * 2 + mt) * 4, 4)}, {A(bb + (ks * 2 + nt) * 4, 4)}, {c}")
        fill = []
        if G + 1 < NG_WQ:
            fill += xb_reads(G + 1)
        fill += a_reads(G + 1)
        interleave(mf, fill, dma_group(G + NSLOT))
    stamp()
    g.barrier()
    for mt in range(2):
        for nt in range(2):
            acc = ACC + (mt * 2 + nt) * 16
            for t in range(2):
                tmp = vT + ((mt * 4 + nt * 2 + t) % 4) * 4
                for k in range(4):
                    E(f"v_cvt_pk_bf16_f32 {V(tmp + k)}, {V(acc + 8 * t + 2 * k)}, {V(acc + 8 * t + 2 * k + 1)}")
                E(f"ds_write_b128 {V(vQW)}, {V(tmp, 4)} offset:{X_BASE + (2 * mt + t) * 2048 + nt * 1024}")
    g.barrier()
    if args.dump == "q":
        dump_x(32768)
    stamp()
    def q_reads(cg):
        out = []
        for i in range(4):
            ks = cg * 4 + i
            for nt in range(2):
                def f(ks=ks, nt=nt):
                    E(f"ds_read_b128 {A(QREG + (ks * 2 + nt) * 4, 4)}, {V(vLin)} offset:{X_BASE + (ks * 2 + nt) * 1024}")
                out.append(f)
        return out
    run(q_reads(0))
    for i in range(NG_K):
        G = G_K + i
        T, cg = i // 4, i % 4
        ab = abuf(G)
        mf = []
        for k4 in range(4):
            ks = cg * 4 + k4
            for nt in range(2):
                acc = V(ACC + (T * 2 + nt) * 16, 16)
                c = "0" if ks == 0 else acc
                mf.append(f"{M32} {acc}, {V(ab + k4 * 4, 4)}, {A(QREG + (ks * 2 + nt) * 4, 4)}, {c}")
        fill = []
        if T == 0 and cg < 3:
            fill += q_reads(cg + 1)
        fill += a_reads(G + 1)
        interleave(mf, fill, dma_group(G + NSLOT))
    stamp()
    def Sreg(T, nt, r):
        return ACC + (T * 2 + nt) * 16 + r
    mx = [vT, vT + 1]
    for nt in range(2):
        vals = [Sreg(T, nt, r) for T in range(4) for r in range(16)]
        ch = [vT + 4 + nt * 4 + k for k in range(4)]
        for k in range(4):
            vs = vals[k * 16:(k + 1) * 16]
            E(f"v_max3_f32 {V(ch[k])}, {V(vs[0])}, {V(vs[1])}, {V(vs[2])}")
        for step in range(3, 15, 2):
            for k in range(4):
                vs = vals[k * 16:(k + 1) * 16]
                E(f"v_max3_f32 {V(ch[k])}, {V(ch[k])}, {V(vs[step])}, {V(vs[step + 1])}")
        for k in range(4):
            vs = vals[k * 16:(k + 1) * 16]
            E(f"v_max_f32 {V(ch[k])}, {V(ch[k])}, {V(vs[15])}")
        E(f"v_max3_f32 {V(mx[nt])}, {V(ch[0])}, {V(ch[1])}, {V(ch[2])}")
        E(f"v_max_f32 {V(mx[nt])}, {V(mx[nt])}, {V(ch[3])}")
    E(f"v_permlane32_swap_b32 {V(mx[0])}, {V(mx[1])}")
    E(f"v_max_f32 {V(mx[0])}, {V(mx[0])}, {V(mx[1])}")
    E(f"ds_write_b32 {V(vSTw)}, {V(mx[0])} offset:{STATS}")
    g.barrier()
    E(f"ds_read_b128 {V(vT + 4, 4)}, {V(vSTr)} offset:{STATS}")
    E(f"ds_read_b128 {V(vT + 8, 4)}, {V(vSTr)} offset:{STATS + 512}")
    for nt in range(2):
        b = vT + 4 + nt * 4
        E(f"v_max3_f32 {V(mx[nt])}, {V(b)}, {V(b + 1)}, {V(b + 2)}")
        E(f"v_max_f32 {V(mx[nt])}, {V(mx[nt])}, {V(b + 3)}")
        E(f"v_mul_f32 {V(mx[nt])}, {S(sC)}, {V(mx[nt])}")
    g.barrier()
    sm = [vT + 2, vT + 3]
    first = [True, True]
    for T in range(4):
        for nt in range(2):
            for t in range(2):
                rs = [Sreg(T, nt, 8 * t + e) for e in range(8)]
                for r in rs:
                    E(f"v_fma_f32 {V(r)}, {V(r)}, {S(sC)}, -{V(mx[nt])}")
                for r in rs:
                    E(f"v_exp_f32 {V(r)}, {V(r)}")
                tmp = vT + 4 + ((T * 4 + nt * 2 + t) % 3) * 4
                for k in range(4):
                    E(f"v_cvt_pk_bf16_f32 {V(tmp + k)}, {V(rs[2 * k])}, {V(rs[2 * k + 1])}")
                E(f"ds_write_b128 {V(vPW)}, {V(tmp, 4)} offset:{X_BASE + (2 * T + t) * 2048 + nt * 1024}")
                E(f"v_add_f32 {V(rs[0])}, {V(rs[0])}, {V(rs[1])}")
                E(f"v_add_f32 {V(rs[2])}, {V(rs[2])}, {V(rs[3])}")
                E(f"v_add_f32 {V(rs[4])}, {V(rs[4])}, {V(rs[5])}")
                E(f"v_add_f32 {V(rs[6])}, {V(rs[6])}, {V(rs[7])}")
                E(f"v_add_f32 {V(rs[0])}, {V(rs[0])}, {V(rs[2])}")
                E(f"v_add_f32 {V(rs[4])}, {V(rs[4])}, {V(rs[6])}")
                if first[nt]:
                    E(f"v_add_f32 {V(sm[nt])}, {V(rs[0])}, {V(rs[4])}")
                    first[nt] = False
                else:
                    E(f"v_add_f32 {V(rs[0])}, {V(rs[0])}, {V(rs[4])}")
                    E(f"v_add_f32 {V(sm[nt])}, {V(sm[nt])}, {V(rs[0])}")
    E(f"v_permlane32_swap_b32 {V(sm[0])}, {V(sm[1])}")
    E(f"v_add_f32 {V(sm[0])}, {V(sm[0])}, {V(sm[1])}")
    g.barrier()
    if args.dump == "p":
        E(f"v_mov_b32 {V(126)}, {V(sm[0])}")
        dump_x(65536)
        E(f"v_mov_b32 {V(sm[0])}, {V(126)}")
    stamp()
    def p_reads(i):
        out = []
        bb = bbuf(G_V + i)
        for ks2 in range(2):
            for nt in range(2):
                def f(ks2=ks2, nt=nt):
                    off = X_BASE + ((2 * i + ks2) * 2 + nt) * 1024
                    E(f"ds_read_b128 {A(bb + (ks2 * 2 + nt) * 4, 4)}, {V(vLin)} offset:{off}")
                out.append(f)
        return out
    run(p_reads(0))
    for i in range(NG_V):
        G = G_V + i
        ab, bb = abuf(G), bbuf(G)
        mf = []
        for ks in range(2):
            for mt in range(2):
                for nt in range(2):
                    acc = V(ACC + (mt * 2 + nt) * 16, 16)
                    c = "0" if (i == 0 and ks == 0) else acc
                    mf.append(f"{M32} {acc}, {V(ab + (ks * 2 + mt) * 4, 4)}, {A(bb + (ks * 2 + nt) * 4, 4)}, {c}")
        fill = []
        if i + 1 < NG_V:
            fill += p_reads(i + 1)
            fill += a_reads(G + 1)
        interleave(mf, fill, dma_group(G + NSLOT))
    stamp()
    g.barrier()
    E(f"ds_write_b32 {V(vSTw)}, {V(sm[0])} offset:{SUMS}")
    for mt in range(2):
        for nt in range(2):
            acc = ACC + (mt * 2 + nt) * 16
            for t in range(2):
                tmp = vT + ((mt * 4 + nt * 2 + t) % 3) * 4 + 4
                for k in range(4):
                    E(f"v_cvt_pk_bf16_f32 {V(tmp + k)}, {V(acc + 8 * t + 2 * k)}, {V(acc + 8 * t + 2 * k + 1)}")
                E(f"ds_write_b128 {V(vOW if mt == 0 else vSMw)}, {V(tmp, 4)} offset:{X_BASE + nt * 2048 + t * 512}")
    run(a_reads(G_WO))
    g.barrier()
    if args.dump == "o":
        dump_x(36864)
    stamp()
    def o_reads(s):
        out = []
        bb = bbuf(s)
        for u in range(4):
            def f(u=u):
                E(f"ds_read_b128 {A(bb + u * 4, 4)}, {V(vLin)} offset:{X_BASE + (s * 4 + u) * 1024}")
            out.append(f)
        return out
    run(o_reads(0))
    for u in range(4):
        E(f"ds_read_b128 {V(vT + u * 4, 4)}, {V(vSMr)} offset:{SUMS + u * 256}")
    for s in range(8):
        G = G_WO + 2 * s
        ab, bb = abuf(s), bbuf(s)
        mf = []
        for m in range(7):
            for u in range(4):
                acc = V(ACC + (m * 4 + u) * 4, 4)
                c = "0" if s == 0 else acc
                mf.append(f"{M16} {acc}, {V(ab + m * 4, 4)}, {A(bb + u * 4, 4)}, {c}")
        fill = []
        if s == 0:
            for u in range(4):
                def f(u=u):
                    b = vT + u * 4
                    E(f"v_add_f32 {V(b)}, {V(b)}, {V(b + 1)}")
                    E(f"v_add_f32 {V(b + 2)}, {V(b + 2)}, {V(b + 3)}")
                    E(f"v_add_f32 {V(b)}, {V(b)}, {V(b + 2)}")
                    E(f"v_rcp_f32 {V(b)}, {V(b)}")
                fill.append(f)
        if s + 1 < 8:
            fill += o_reads(s + 1)
            fill += a_reads(G + 2)
        interleave(mf, fill, dma_group(G + NSLOT) + dma_group(G + 1 + NSLOT), lead=2)
    stamp()
    fl = (" " + args.stsc) if args.stsc else ""
    cnt = 0
    for m in range(7):
        for u in range(4):
            acc = ACC + (m * 4 + u) * 4
            rinv = V(vT + u * 4)
            for k in range(4):
                E(f"v_mul_f32 {V(acc + k)}, {V(acc + k)}, {rinv}")
            if PART_F32:
                E(f"buffer_store_dwordx4 {V(acc, 4)}, {V(vOut)}, {S(SRD_P, 4)}, {S(sST + u)} offen offset:{m * 64}{fl}")
            else:
                E(f"v_cvt_pk_bf16_f32 {V(acc)}, {V(acc)}, {V(acc + 1)}")
                E(f"v_cvt_pk_bf16_f32 {V(acc + 1)}, {V(acc + 2)}, {V(acc + 3)}")
                E(f"buffer_store_dwordx2 {V(acc, 2)}, {V(vOut)}, {S(SRD_P, 4)}, {S(sST + u)} offen offset:{m * 32}{fl}")
    if args.stamps:
        g.wait_vm()
        stamp()
        n = stamp_n[0]
        E(f"v_mov_b32 {V(vT)}, 0")
        E(f"v_accvgpr_read_b32 {V(vT + 3)}, {A(STAMP_A)}")
        for k in range(n):
            E(f"v_accvgpr_read_b32 {V(vT + 1)}, {A(STAMP_A + k)}")
            E(f"v_sub_u32 {V(vT + 1)}, {V(vT + 1)}, {V(vT + 3)}")
            E(f"v_cmp_eq_u32 vcc, {k}, {V(vL)}")
            E(f"v_cndmask_b32 {V(vT)}, {V(vT)}, {V(vT + 1)}, vcc")
        g.raw(f"s_getreg_b32 {S(sT0)}, hwreg(HW_REG_XCC_ID)")
        E(f"v_mov_b32 {V(vT + 1)}, {S(sT0)}")
        E(f"v_cmp_eq_u32 vcc, 62, {V(vL)}")
        E(f"v_cndmask_b32 {V(vT)}, {V(vT)}, {V(vT + 1)}, vcc")
        E(f"v_lshlrev_b32 {V(vT + 2)}, 2, v0")
        E(f"buffer_store_dword {V(vT)}, {V(vT + 2)}, {S(SRD_D, 4)}, 0 offen")
    if args.dbgtime:
        g.wait_vm()
        g.raw("s_memtime s[88:89]")
        g.raw("s_memrealtime s[90:91]")
        g.raw("s_waitcnt lgkmcnt(0)")
        E("s_mul_hi_u32 s80, s2, 50529028")
        E("s_mul_i32 s81, s80, 85")
        E("s_cmp_eq_u32 s81, s2")
        g.raw("s_cbranch_scc0 K1_END")
        E("s_sub_u32 s88, s88, s96")
        E(f"v_mov_b32 {V(vT)}, s88")
        E(f"v_mov_b32 {V(vT + 1)}, s98")
        E(f"v_mov_b32 {V(vT + 2)}, s90")
        E(f"v_mov_b32 {V(vT + 3)}, s2")
        E("s_lshl_b32 s80, s80, 4")
        E(f"s_add_u32 s80, s80, {100 << 20}")
        E(f"v_mov_b32 {V(vT + 4)}, s80")
        E("v_cmp_eq_u32 vcc, 0, v0")
        g.raw("s_nop 4")
        g.raw("s_and_saveexec_b64 s[82:83], vcc")
        g.raw("s_cbranch_execz K1_END")
        E(f"global_store_dwordx4 {V(vT + 4)}, {V(vT, 4)}, {S(sPTR + 24, 2)}")
    g.raw("K1_END:")
    g.raw("s_endpgm")


def k2():
    h = Gen()
    e = h.emit
    h.raw("s_cmp_ge_u32 s2, 896")
    h.raw("s_cbranch_scc1 K2_END")
    h.raw("s_load_dwordx2 s[4:5], s[0:1], 80")
    h.raw("s_load_dwordx2 s[6:7], s[0:1], 96")
    if args.dbgtime:
        h.raw("s_load_dwordx2 s[40:41], s[0:1], 88")
        h.raw("s_memrealtime s[42:43]")
    e("s_mul_hi_u32 s3, s2, 0x4924925")
    e("s_mul_i32 s8, s3, 56")
    e("s_sub_u32 s8, s2, s8")
    e("s_lshl_b32 s8, s8, 6")
    e("v_add_u32 v1, s8, v0")
    esz = 4 if PART_F32 else 2
    e(f"v_lshlrev_b32 v2, {5 if PART_F32 else 4}, v1")
    e("s_mov_b32 s9, 0x4924925")
    e("v_mul_hi_u32 v3, v1, s9")
    e("v_mul_u32_u24 v4, 56, v3")
    e("v_sub_u32 v4, v1, v4")
    e("s_and_b32 s10, s3, 7")
    e("s_lshr_b32 s11, s3, 3")
    e("s_mul_i32 s10, s10, 114688")
    e("s_mul_i32 s11, s11, 896")
    e("s_add_u32 s10, s10, s11")
    e("v_mul_u32_u24 v3, 1792, v3")
    e("v_lshl_add_u32 v3, v4, 4, v3")
    e("v_add_u32 v3, s10, v3")
    h.raw("s_waitcnt lgkmcnt(0)")
    e(f"s_mul_i32 s12, s3, {16 * PART_BYTES}")
    e("s_add_u32 s16, s6, s12")
    e("s_addc_u32 s17, s7, 0")
    e("s_and_b32 s17, s17, 0xffff")
    e(f"s_mov_b32 s18, {16 * PART_BYTES}")
    e("s_mov_b32 s19, 0x00020000")
    e("s_mov_b32 s20, s4")
    e("s_and_b32 s21, s5, 0xffff")
    e(f"s_mov_b32 s22, {8 * 64 * 896 * 2}")
    e("s_mov_b32 s23, 0x00020000")
    for hh in range(16):
        e(f"s_mov_b32 s{24 + hh}, {hh * PART_BYTES}")
    if PART_F32:
        for hh in range(16):
            e(f"buffer_load_dwordx4 {V(8 + hh * 8, 4)}, v2, s[16:19], s{24 + hh} offen")
            e(f"buffer_load_dwordx4 {V(12 + hh * 8, 4)}, v2, s[16:19], s{24 + hh} offen offset:16")
        for hh in range(1, 16):
            for k in range(0, 8, 2):
                e(f"v_pk_add_f32 {V(8 + k, 2)}, {V(8 + k, 2)}, {V(8 + hh * 8 + k, 2)}")
        for k in range(4):
            e(f"v_cvt_pk_bf16_f32 {V(4 + k)}, {V(8 + 2 * k)}, {V(9 + 2 * k)}")
        nv = 136
    else:
        for hh in range(16):
            e(f"buffer_load_dwordx4 {V(16 + hh * 4, 4)}, v2, s[16:19], s{24 + hh} offen")
        for hh in range(16):
            for k in range(4):
                src = 16 + hh * 4 + k
                if hh == 0:
                    e(f"v_lshlrev_b32 {V(8 + 2 * k)}, 16, {V(src)}")
                    e(f"v_and_b32 {V(9 + 2 * k)}, 0xffff0000, {V(src)}")
                else:
                    e(f"v_lshlrev_b32 {V(4 + (k % 2) * 2)}, 16, {V(src)}")
                    e(f"v_and_b32 {V(5 + (k % 2) * 2)}, 0xffff0000, {V(src)}")
                    e(f"v_pk_add_f32 {V(8 + 2 * k, 2)}, {V(8 + 2 * k, 2)}, {V(4 + (k % 2) * 2, 2)}")
        for k in range(4):
            e(f"v_cvt_pk_bf16_f32 {V(4 + k)}, {V(8 + 2 * k)}, {V(9 + 2 * k)}")
        nv = 80
    e("buffer_store_dwordx4 v[4:7], v3, s[20:23], 0 offen")
    if args.dbgtime:
        h.wait_vm()
        h.raw("s_memrealtime s[44:45]")
        h.raw("s_waitcnt lgkmcnt(0)")
        e("s_cmp_eq_u32 s2, 895")
        h.raw("s_cbranch_scc0 K2_END")
        e("v_lshlrev_b32 v1, 2, v0")
        e(f"v_add_u32 v2, {100 << 20}, v1")
        e("v_cmp_gt_u32 vcc, 16, v0")
        h.raw("s_nop 4")
        h.raw("s_and_saveexec_b64 s[46:47], vcc")
        h.raw("s_cbranch_execz K2_END")
        e("global_load_dword v3, v2, s[6:7]")
        e("v_mov_b32 v4, s42")
        e("v_cmp_eq_u32 vcc, 3, v0")
        e("v_cndmask_b32 v3, v3, v4, vcc")
        e("v_mov_b32 v4, s44")
        e("v_cmp_eq_u32 vcc, 7, v0")
        e("v_cndmask_b32 v3, v3, v4, vcc")
        e("global_store_dword v1, v3, s[40:41]")
    h.raw("K2_END:")
    h.raw("s_endpgm")
    return h.finish(), nv


k1()
body1 = g.finish()
nins = sum(1 for l in body1.splitlines() if l.strip() and not l.strip().startswith(';') and not l.strip().endswith(':'))
code_bytes = nins * 8
body2, nv2 = k2()

desc = lambda name, nv, acc, ns: f""".p2align 6
.amdhsa_kernel {name}
  .amdhsa_next_free_vgpr {nv}
  .amdhsa_next_free_sgpr {ns}
  .amdhsa_accum_offset {acc}
  .amdhsa_group_segment_fixed_size 0
  .amdhsa_kernarg_size 104
  .amdhsa_user_sgpr_count 2
  .amdhsa_user_sgpr_kernarg_segment_ptr 1
  .amdhsa_system_sgpr_workgroup_id_x 1
.end_amdhsa_kernel
"""
K1 = NAME + "_kernel"
K2 = "reduce_partials_kernel"
txt = HEADER
txt += f"; @launch kernel={K1} grid=(256,1,1) block=(256,1,1) lds={LDS_BYTES}\n"
if not args.nok2:
    txt += f"; @launch kernel={K2} grid=(896,1,1) block=(64,1,1) lds=0\n"
txt += f""".amdgcn_target "amdgcn-amd-amdhsa--gfx950"
.text
.globl {K1}
.p2align 8
.type {K1},@function
{K1}:
{body1}
.globl {K2}
.p2align 8
.type {K2},@function
{K2}:
{body2}
CODE_END:
.fill 64, 4, 0xbf800000
.section .rodata,"a"
{desc(K1, 512, 256, 102)}
{desc(K2, nv2, (nv2 + 3) // 4 * 4, 48)}
"""
open(args.o, "w").write(txt)
print(f"wrote {args.o}: k1 {nins} instrs")
```

```python
import sys, math, argparse, struct
from asmgen import Gen, V, A, S, R

NAME = "concat_heads__gqa_block_cached__gqa_block_cached__near_ridge"
HEADER = open("cdna_kernels/" + NAME + ".s.ref").read().split("; Override launch")[0]

ap = argparse.ArgumentParser()
ap.add_argument("-o", default="k.s")
ap.add_argument("--stamps", action="store_true")
ap.add_argument("--dbgtime", action="store_true")
ap.add_argument("--nok2", action="store_true")
ap.add_argument("--kvfl", default="nt")
ap.add_argument("--stsc", default="sc1")
ap.add_argument("--nopf", action="store_true")
ap.add_argument("--rot", type=int, default=1)
ap.add_argument("--latw", type=int, default=1500)
ap.add_argument("--latk", type=int, default=2000)
ap.add_argument("--dgap", type=int, default=20)
ap.add_argument("--pacew", type=int, default=300)
ap.add_argument("--pacek", type=int, default=580)
ap.add_argument("--rdtick", type=int, default=4)
ap.add_argument("--init", type=int, default=3, help="units DMA'd before waiting for x")
ap.add_argument("--kearly", type=int, default=0, help="interleave K units into the wq stream starting after this many wq units (0=off)")
ap.add_argument("--kratio", type=int, default=1)
ap.add_argument("--woearly", type=int, default=16)
ap.add_argument("--woratio", type=int, default=1)
ap.add_argument("--noabsorb", action="store_true")
ap.add_argument("--verbose", action="store_true")
ap.add_argument("--nomfma", action="store_true")
ap.add_argument("--novalu", action="store_true")
ap.add_argument("--skip", default="", help="timing experiments: comma list of streams whose DMAs are dropped")
args = ap.parse_args()

PART_BYTES = 64 * 448 * 2

X_BASE = 0
STATS = 57344
SUMS = 32768
RING0 = 65536
NSLOT = 6
RING_W = NSLOT * 4096
LDS_BYTES = RING0 + 4 * RING_W
assert LDS_BYTES <= 163840

sW, sRING, sOFF, sC = 4, 5, 6, 7
SRD_X, SRD_WQ, SRD_K, SRD_V, SRD_WO, SRD_P = 8, 12, 16, 20, 24, 28
sB, sH, sBR, sKV = 32, 33, 34, 35
sPTR = 36
sPC = 62
sT0, sT1, sT2, sT3 = 64, 65, 66, 67
sST = 68
SRD_D = 72
sTM = 76
sROT8 = 78
sRQ = 80
sRO = 88

vL = 1
vXD = 2
vWD = 4
vKD = 8
vVD = 12
vOD = 16
vRBx = 20
vRBk = 24
vTRw = 28
vTRv = 30
vTRo = 32
vLin = 39
vQW = 40
vPW = 41
vOW = 42
vSTw = 43
vSTr = 44
vOW2 = 45
vSMr = 46
vOut = 47
vT = 48
ACC = 128
BBUF = 128
QREG = 0
STAMP_A = 240

g = Gen()
now = [0.0]
shadow = [0.0]


def cost_of(text):
    op = text.split()[0]
    if op.startswith("v_mfma"):
        return None
    if op in ("v_exp_f32", "v_rcp_f32"):
        return 8
    if op.startswith("v_") or op.startswith("s_"):
        return 4
    if op.startswith("ds_write"):
        return 16
    if op.startswith("ds_"):
        return 6
    return 12


def E(text, tag=None):
    drop = (args.nomfma and text.startswith("v_mfma")) or (args.novalu and text.split()[0] in ("v_exp_f32", "v_fma_f32", "v_max3_f32", "v_pk_add_f32"))
    if tag and isinstance(tag, tuple) and tag[0] == "G" and tag[1][0] in args.skip.split(","):
        drop = True
    if not drop:
        g.emit(text, tag)
    c = cost_of(text)
    if c is None:
        m = 32 if "32x32" in text else 16
        now[0] += max(shadow[0], 0) + 8
        shadow[0] = m - 8
    else:
        use = min(c, max(shadow[0], 0))
        shadow[0] -= use
        now[0] += c


def f32bits(x):
    return struct.unpack("<I", struct.pack("<f", x))[0]


stamp_n = [0]
def stamp():
    if not args.stamps:
        return
    k = stamp_n[0]; stamp_n[0] += 1
    assert k < 16
    g.raw(f"s_memtime {S(sTM, 2)}")
    g.raw("s_waitcnt lgkmcnt(0)")
    g.lg = []
    E(f"v_accvgpr_write_b32 {A(STAMP_A + k)}, {S(sTM)}")


def srd(base, ptr, off_sreg, nrec):
    E(f"s_add_u32 {S(base)}, {S(ptr)}, {S(off_sreg)}")
    E(f"s_addc_u32 {S(base + 1)}, {S(ptr + 1)}, 0")
    E(f"s_and_b32 {S(base + 1)}, {S(base + 1)}, 0xffff")
    if isinstance(nrec, int):
        E(f"s_mov_b32 {S(base + 2)}, {nrec}")
    else:
        E(f"s_sub_u32 {S(base + 2)}, {nrec[0]}, {S(nrec[1])}")
    E(f"s_mov_b32 {S(base + 3)}, 0x00020000")


t = [vT + 4 + i for i in range(10)]
l3, l7, l4 = t[0], t[1], t[2]


def prologue_a():
    g.raw("s_cmp_ge_u32 s2, 256")
    g.raw("s_cbranch_scc1 K1_END")
    if args.dbgtime:
        g.raw("s_memtime s[96:97]")
        g.raw("s_memrealtime s[98:99]")
    stamp()
    g.raw(f"s_load_dwordx16 {S(sPTR, 16)}, s[0:1], 0")
    g.raw(f"s_load_dwordx8 {S(sPTR + 16, 8)}, s[0:1], 64")
    g.raw(f"s_load_dwordx2 {S(sPTR + 24, 2)}, s[0:1], 96")
    if not args.nopf:
        E(f"s_getpc_b64 {S(sPC, 2)}")
        g.raw("K1_PC:")
        E(f"v_lshlrev_b32 {V(vT)}, 7, v0")
        E(f"v_min_u32 {V(vT + 2)}, CODE_END-K1_PC-4, {V(vT)}")
        E(f"global_load_dword {V(vT + 1)}, {V(vT + 2)}, {S(sPC, 2)}", tag="pf")
    E(f"v_and_b32 {V(vL)}, 63, v0")
    E(f"v_lshrrev_b32 {V(vT + 3)}, 6, v0")
    E(f"v_readfirstlane_b32 {S(sW)}, {V(vT + 3)}")
    E(f"s_and_b32 {S(sT0)}, s2, 7")
    E(f"s_lshr_b32 {S(sT1)}, s2, 3")
    E(f"s_lshr_b32 {S(sT2)}, {S(sT1)}, 4")
    E(f"s_lshl_b32 {S(sT0)}, {S(sT0)}, 1")
    E(f"s_add_u32 {S(sT0)}, {S(sT0)}, {S(sT2)}")
    E(f"s_lshr_b32 {S(sBR)}, {S(sT0)}, 3")
    E(f"s_and_b32 {S(sKV)}, {S(sT0)}, 7")
    E(f"s_lshr_b32 {S(sB)}, {S(sT1)}, 1")
    E(f"s_and_b32 {S(sB)}, {S(sB)}, 7")
    E(f"s_and_b32 {S(sT2)}, {S(sT1)}, 1")
    E(f"s_lshl_b32 {S(sH)}, {S(sKV)}, 1")
    E(f"s_add_u32 {S(sH)}, {S(sH)}, {S(sT2)}")
    E(f"s_mul_i32 {S(sRING)}, {S(sW)}, {RING_W}")
    E(f"s_add_u32 {S(sRING)}, {S(sRING)}, {RING0}")
    if args.rot:
        E(f"s_cmp_eq_u32 {S(sB)}, 7")
        E(f"s_cselect_b32 {S(sT0)}, 3, {S(sB)}")
    else:
        E(f"s_mov_b32 {S(sT0)}, 0")
    for i in range(7):
        E(f"s_add_u32 {S(sT1)}, {S(sT0)}, {i}")
        E(f"s_sub_u32 {S(sT2)}, {S(sT1)}, 7")
        E(f"s_cmp_ge_u32 {S(sT1)}, 7")
        E(f"s_cselect_b32 {S(sT1)}, {S(sT2)}, {S(sT1)}")
        E(f"s_lshl_b32 {S(sRQ + i)}, {S(sT1)}, 19")
    l = V(vL)
    E(f"v_lshrrev_b32 {V(l3)}, 3, {l}")
    E(f"v_and_b32 {V(l7)}, 7, {l}")
    E(f"v_lshrrev_b32 {V(l4)}, 4, {l}")
    E(f"s_lshl_b32 {S(sT3)}, {S(sW)}, 7")
    E(f"s_mul_i32 {S(sT0)}, {S(sW)}, {16 * 896}")
    E(f"v_mul_u32_u24 {V(t[4])}, 896, {V(l3)}")
    E(f"v_add_u32 {V(t[4])}, {S(sT0)}, {V(t[4])}")
    E(f"v_xor_b32 {V(t[5])}, {V(l7)}, {V(l4)}")
    E(f"v_lshl_add_u32 {V(vXD)}, {V(t[5])}, 4, {V(t[4])}")
    E(f"v_xor_b32 {V(t[6])}, 4, {V(t[5])}")
    E(f"v_lshl_add_u32 {V(vXD + 1)}, {V(t[6])}, 4, {V(t[4])}")
    E(f"v_add_u32 {V(vXD + 1)}, {8 * 896}, {V(vXD + 1)}")
    E(f"s_lshl_b32 {S(sT0)}, {S(sW)}, 16")
    E(f"v_lshl_add_u32 {V(t[4])}, {V(l3)}, 9, {S(sT0)}")
    for j in range(4):
        E(f"v_lshl_add_u32 {V(vKD + j)}, {V(t[5] if j % 2 == 0 else t[6])}, 4, {V(t[4])}")
        if j:
            E(f"v_add_u32 {V(vKD + j)}, {j * 3072}, {V(vKD + j)}")
    E(f"v_and_b32 {V(t[7])}, 1, {V(l4)}")
    E(f"v_lshlrev_b32 {V(t[7])}, 2, {V(t[7])}")
    E(f"v_xor_b32 {V(t[7])}, {V(l7)}, {V(t[7])}")
    E(f"v_lshl_add_u32 {V(t[7])}, {V(t[7])}, 4, {S(sT3)}")
    E(f"v_lshl_add_u32 {V(vWD)}, {V(l3)}, 13, {V(t[7])}")
    E(f"v_lshl_add_u32 {V(vVD)}, {V(l3)}, 9, {V(t[7])}")
    for j in range(1, 4):
        E(f"v_add_u32 {V(vWD + j)}, {j * (65536 - 1024)}, {V(vWD)}")
        E(f"v_add_u32 {V(vVD + j)}, {j * 3072}, {V(vVD)}")
    g.raw("s_waitcnt lgkmcnt(0)")
    E(f"s_cmp_eq_u32 {S(sBR)}, 0")
    for i in range(0, 10, 2):
        E(f"s_cselect_b64 {S(sPTR + i, 2)}, {S(sPTR + i, 2)}, {S(sPTR + 10 + i, 2)}")
    E(f"s_mul_i32 {S(sT0)}, {S(sB)}, 57344")
    srd(SRD_X, sPTR + 0, sT0, 57344)
    E(f"s_lshl_b32 {S(sT0)}, {S(sH)}, 9")
    srd(SRD_WQ, sPTR + 6, sT0, (448 * 8192, sT0))
    E(f"s_lshl_b32 {S(sT0)}, {S(sB)}, 3")
    E(f"s_add_u32 {S(sT0)}, {S(sT0)}, {S(sKV)}")
    E(f"s_lshl_b32 {S(sT0)}, {S(sT0)}, 18")
    srd(SRD_K, sPTR + 2, sT0, 262144)
    srd(SRD_V, sPTR + 4, sT0, 262144)


def prologue_b():
    l = V(vL)
    E(f"s_mov_b32 {S(sC)}, 0x{f32bits(math.log2(math.e) / 16.0):08x}")
    E(f"s_mul_i32 {S(sT0)}, {S(sH)}, 229376")
    srd(SRD_WO, sPTR + 8, sT0, 229376)
    E(f"s_lshl_b32 {S(sT0)}, {S(sBR)}, 3")
    E(f"s_add_u32 {S(sT0)}, {S(sT0)}, {S(sB)}")
    E(f"s_lshl_b32 {S(sT0)}, {S(sT0)}, 4")
    E(f"s_add_u32 {S(sT0)}, {S(sT0)}, {S(sH)}")
    E(f"s_mul_i32 {S(sT1)}, {S(sT0)}, {PART_BYTES}")
    srd(SRD_P, sPTR + 24, sT1, PART_BYTES)
    if args.stamps:
        E(f"s_lshl_b32 {S(sT1)}, {S(sT0)}, 16")
        E(f"s_add_u32 {S(sT1)}, {S(sT1)}, {64 << 20}")
        srd(SRD_D, sPTR + 24, sT1, 65536)
    for u in range(4):
        E(f"s_mov_b32 {S(sST + u)}, {u * 4096}")
    E(f"s_mov_b32 {S(sROT8)}, {S(sB)}" if args.rot else f"s_mov_b32 {S(sROT8)}, 0")
    for i in range(8):
        E(f"s_add_u32 {S(sT1)}, {S(sROT8)}, {i}")
        E(f"s_and_b32 {S(sT1)}, {S(sT1)}, 7")
        E(f"s_mul_i32 {S(sRO + i)}, {S(sT1)}, 28672")
    E(f"v_bfe_u32 {V(t[4])}, {l}, 1, 3")
    E(f"v_xor_b32 {V(t[4])}, {V(t[4])}, {V(l4)}")
    E(f"v_xor_b32 {V(t[5])}, 4, {V(t[4])}")
    E(f"v_min_u32 {V(t[4])}, 6, {V(t[4])}")
    E(f"v_min_u32 {V(t[5])}, 6, {V(t[5])}")
    E(f"v_and_b32 {V(t[6])}, 1, {l}")
    E(f"v_lshlrev_b32 {V(t[6])}, 4, {V(t[6])}")
    E(f"v_mul_u32_u24 {V(t[7])}, 896, {V(l4)}")
    E(f"s_mul_i32 {S(sT0)}, {S(sW)}, 224")
    E(f"v_add3_u32 {V(t[6])}, {V(t[6])}, {V(t[7])}, {S(sT0)}")
    for j in range(4):
        E(f"v_lshl_add_u32 {V(vOD + j)}, {V(t[4] if j < 2 else t[5])}, 5, {V(t[6])}")
        if j:
            E(f"v_add_u32 {V(vOD + j)}, {j * (3584 - 1024)}, {V(vOD + j)}")
    n, hf = t[4], t[5]
    E(f"v_and_b32 {V(n)}, 31, {l}")
    E(f"v_lshrrev_b32 {V(hf)}, 5, {l}")
    E(f"v_lshrrev_b32 {V(t[6])}, 3, {V(n)}")
    E(f"v_lshlrev_b32 {V(t[6])}, 10, {V(t[6])}")
    E(f"v_lshl_add_u32 {V(t[6])}, {V(l7)}, 7, {V(t[6])}")
    E(f"v_bfe_u32 {V(t[7])}, {V(n)}, 1, 3")
    E(f"v_xor_b32 {V(t[7])}, {V(t[7])}, {V(hf)}")
    for i in range(4):
        E(f"v_xor_b32 {V(t[8])}, {2 * i}, {V(t[7])}")
        E(f"v_lshl_add_u32 {V(vRBx + i)}, {V(t[8])}, 4, {V(t[6])}")
        E(f"v_add_u32 {V(vRBk + i)}, {S(sRING)}, {V(vRBx + i)}")
    r, c = t[6], t[7]
    E(f"v_bfe_u32 {V(r)}, {l}, 2, 2")
    E(f"v_and_b32 {V(c)}, 3, {l}")
    E(f"v_lshlrev_b32 {V(t[8])}, 7, {V(r)}")
    E(f"v_lshrrev_b32 {V(t[9])}, 1, {V(r)}")
    E(f"v_lshl_add_u32 {V(t[8])}, {V(t[9])}, 6, {V(t[8])}")
    E(f"v_and_b32 {V(t[9])}, 1, {V(l4)}")
    E(f"v_lshl_add_u32 {V(t[8])}, {V(t[9])}, 5, {V(t[8])}")
    E(f"v_and_b32 {V(t[9])}, 1, {V(c)}")
    E(f"v_lshl_add_u32 {V(t[8])}, {V(t[9])}, 4, {V(t[8])}")
    E(f"v_lshrrev_b32 {V(t[9])}, 1, {V(c)}")
    E(f"v_lshl_add_u32 {V(t[8])}, {V(t[9])}, 3, {V(t[8])}")
    E(f"v_add_u32 {V(t[8])}, {S(sRING)}, {V(t[8])}")
    E(f"v_lshl_add_u32 {V(vTRw)}, {V(hf)}, 10, {V(t[8])}")
    E(f"v_xor_b32 {V(vTRw + 1)}, 64, {V(vTRw)}")
    E(f"v_lshl_add_u32 {V(vTRv)}, {V(hf)}, 9, {V(t[8])}")
    E(f"v_xor_b32 {V(vTRv + 1)}, 64, {V(vTRv)}")
    E(f"v_lshlrev_b32 {V(t[8])}, 11, {V(l4)}")
    E(f"v_lshl_add_u32 {V(t[8])}, {V(r)}, 8, {V(t[8])}")
    E(f"v_lshl_add_u32 {V(t[8])}, {V(c)}, 3, {V(t[8])}")
    E(f"v_add_u32 {V(t[8])}, {S(sRING)}, {V(t[8])}")
    E(f"v_and_b32 {V(t[9])}, 1, {V(l4)}")
    E(f"v_lshl_or_b32 {V(t[9])}, {V(t[9])}, 2, {V(r)}")
    E(f"v_lshl_add_u32 {V(vTRo)}, {V(t[9])}, 5, {V(t[8])}")
    for m in range(1, 7):
        E(f"v_xor_b32 {V(vTRo + m)}, {m * 32}, {V(vTRo)}")
    E(f"v_lshlrev_b32 {V(vLin)}, 4, {l}")
    E(f"s_lshl_b32 {S(sT0)}, {S(sW)}, 13")
    E(f"v_add_u32 {V(vQW)}, {S(sT0)}, {V(vLin)}")
    E(f"s_lshl_b32 {S(sT1)}, {S(sW)}, 14")
    E(f"v_add_u32 {V(vPW)}, {S(sT1)}, {V(vLin)}")
    E(f"v_lshrrev_b32 {V(t[8])}, 4, {V(n)}")
    E(f"v_lshlrev_b32 {V(t[8])}, 10, {V(t[8])}")
    E(f"v_lshl_add_u32 {V(t[8])}, {V(hf)}, 8, {V(t[8])}")
    E(f"v_and_b32 {V(t[9])}, 15, {l}")
    E(f"v_lshl_add_u32 {V(t[8])}, {V(t[9])}, 4, {V(t[8])}")
    for mt in range(2):
        E(f"s_lshl_b32 {S(sT1)}, {S(sW)}, 1")
        E(f"s_add_u32 {S(sT1)}, {S(sT1)}, {8 + mt}")
        E(f"s_sub_u32 {S(sT1)}, {S(sT1)}, {S(sROT8)}")
        E(f"s_and_b32 {S(sT1)}, {S(sT1)}, 7")
        E(f"s_lshl_b32 {S(sT1)}, {S(sT1)}, 12")
        E(f"v_add_u32 {V(vOW if mt == 0 else vOW2)}, {S(sT1)}, {V(t[8])}")
    E(f"s_lshl_b32 {S(sT0)}, {S(sW)}, 2")
    E(f"v_add_u32 {V(vSTw)}, {S(sT0)}, {V(vLin)}")
    E(f"v_lshlrev_b32 {V(vSTr)}, 4, {V(n)}")
    E(f"v_lshlrev_b32 {V(vSMr)}, 4, {V(t[9])}")
    E(f"s_mul_i32 {S(sT0)}, {S(sW)}, 14336")
    E(f"v_add_u32 {V(vOut)}, {S(sT0)}, {V(vLin)}")


def dma_x():
    E(f"s_lshl_b32 {S(sT0)}, {S(sW)}, 11")
    for cg in range(7):
        E(f"s_lshr_b32 {S(sOFF)}, {S(sRQ + cg)}, 12")
        for par in range(2):
            E(f"s_add_u32 m0, {S(sT0)}, {X_BASE + (cg * 8 + par) * 1024}")
            E(f"buffer_load_dwordx4 {V(vXD + par)}, {S(SRD_X, 4)}, {S(sOFF)} offen lds", tag="X")


def cons_pos(u):
    k, i = u
    return {"wq": 0, "k": 14, "v": 30, "wo": 46}[k] + i


INF = 1e9
chunks = []
for b in range(64, 128, 16):
    chunks.append(("v", b, [(0, INF)]))
for b in range(160, 240 if args.stamps else 256, 16):
    chunks.append(("a", b, [(0, INF)]))
for b in range(0, 128, 16):
    chunks.append(("a", b, [(0, 13.5), (29.6, INF)]))
for b in range(192, 240, 16):
    chunks.append(("v", b, [(0, 22), (29.9, 46)]))
chunks.append(("v", 240, [(0, 22), (29.9, INF)]))


class Engine:
    def __init__(self, order):
        self.order = order
        self.qd = 0; self.dsub = 0
        self.qr = 0; self.rsub = 0
        self.slot_owner = [None] * NSLOT
        self.slot_last = [None] * NSLOT
        self.slot = {}; self.tdma = {}; self.regs = {}; self.done = set()
        self.chunk_busy = [None] * len(chunks)
        self.last_dma = -INF
        self.pos = 0.0
        self.rlist = None
        self.land = {}
        self.last_land = 3000

    def nblk(self, u): return 8 if u[0] == "wo" else 4

    def find_slots(self, u, force):
        need = 2 if u[0] == "wo" else 1
        best = None
        for s in range(0, NSLOT, need):
            if all(self.slot_owner[s + k] is None for k in range(need)):
                tl = max((self.slot_last[s + k][1] if self.slot_last[s + k] else -INF) for k in range(need))
                if not force and now[0] - tl < 100:
                    continue
                if best is None or tl < best[1]:
                    best = (s, tl)
        return None if best is None else best[0]

    def find_chunks(self, u):
        need = 2 if u[0] == "wo" else 1
        cp = cons_pos(u)
        cand = []
        for i, (k, b, wins) in enumerate(chunks):
            if self.chunk_busy[i] is not None:
                continue
            for (a, z) in wins:
                if a <= self.pos and cp < z:
                    cand.append((z, i))
                    break
        if len(cand) < need:
            return None
        cand.sort()
        return [i for _, i in cand[:need]]

    def dma_params(self, u, half):
        k, i = u
        nt = (" " + args.kvfl.replace("_", " ")) if args.kvfl else ""
        if k == "wq":
            return SRD_WQ, vWD, (sRQ + i // 2, (i % 2) * 262144), ""
        if k == "k":
            return SRD_K, vKD, (i // 4) * 16384 + (i % 4) * 128, nt
        if k == "v":
            return SRD_V, vVD, i * 16384, nt
        return SRD_WO, vOD, (sRO + i, half * 14336), ""

    def step_dma(self, force=False):
        if self.qd >= len(self.order):
            return False
        u = self.order[self.qd]
        if self.dsub == 0:
            s = self.find_slots(u, force)
            if s is None:
                return False
            for k in range(self.nblk(u) // 4):
                if self.slot_last[s + k]:
                    g.wait_ds(("A", self.slot_last[s + k][0]))
                self.slot_owner[s + k] = u
            self.slot[u] = s
        half, j = self.dsub // 4, self.dsub % 4
        srd_, vo, so, fl = self.dma_params(u, half)
        if j == 0:
            E(f"s_add_u32 m0, {S(sRING)}, {(self.slot[u] + half) * 4096}")
            if isinstance(so, tuple):
                E(f"s_add_u32 {S(sOFF)}, {S(so[0])}, {so[1]}")
            else:
                E(f"s_mov_b32 {S(sOFF)}, {so}")
        off = f" offset:{j * 1024}" if j else ""
        E(f"buffer_load_dwordx4 {V(vo + j)}, {S(srd_, 4)}, {S(sOFF)} offen{off}{fl} lds", tag=("G", u))
        self.last_dma = now[0]
        self.dsub += 1
        if self.dsub == self.nblk(u):
            self.tdma[u] = now[0]
            kv = u[0] in ("k", "v")
            lat = args.latk if kv else args.latw
            pace = (args.pacek if kv else args.pacew) * self.nblk(u) // 4
            self.land[u] = max(now[0] + lat, self.last_land + pace)
            self.last_land = self.land[u]
            self.dsub = 0
            self.qd += 1
        return True

    def reg(self, u, idx, n):
        ch = self.regs[u][idx // 16]
        k, b, _ = chunks[ch]
        return R(k, b + idx % 16, n)

    def read_list(self, u):
        k, i = u
        so = self.slot[u] * 4096
        out = []
        if k in ("wq", "v"):
            base = vTRw if k == "wq" else vTRv
            for ks in range(2):
                for mt in range(2):
                    for r2 in range(2):
                        off = so + ks * 2048 + r2 * (512 if k == "wq" else 1024)
                        out.append(f"ds_read_b64_tr_b16 {self.reg(u, (ks * 2 + mt) * 4 + r2 * 2, 2)}, {V(base + mt)} offset:{off}")
        elif k == "k":
            for q in range(4):
                out.append(f"ds_read_b128 {self.reg(u, q * 4, 4)}, {V(vRBk + q)} offset:{so}")
        else:
            for m in range(7):
                for r2 in range(2):
                    out.append(f"ds_read_b64_tr_b16 {self.reg(u, m * 4 + r2 * 2, 2)}, {V(vTRo + m)} offset:{so + r2 * 1024}")
        return out

    def step_read(self, force=False, nmax=None):
        if self.qr >= len(self.order):
            return False
        u = self.order[self.qr]
        if u not in self.tdma:
            return False
        if self.rlist is None:
            if not force:
                if now[0] < self.land[u]:
                    return False
                if args.noabsorb and cons_pos(u) > self.pos + 1.5:
                    return False
            ch = self.find_chunks(u)
            if ch is None:
                if force:
                    raise RuntimeError(f"no chunk for {u} at pos {self.pos}")
                return False
            for c in ch:
                self.chunk_busy[c] = u
            self.regs[u] = ch
            self.rlist = self.read_list(u)
            g.wait_vm(("G", u))
            if now[0] < self.land[u]:
                now[0] = self.land[u]; shadow[0] = 0
            if args.verbose:
                print(f"read {u} at t={now[0]:.0f} pos={self.pos} (dma t={self.tdma[u]:.0f}) {'FORCED' if force else ''}")
        n = args.rdtick if nmax is None else nmax
        for _ in range(n):
            if not self.rlist:
                break
            E(self.rlist.pop(0), tag=("A", u))
        if not self.rlist:
            self.rlist = None
            s = self.slot[u]
            for k in range(self.nblk(u) // 4):
                self.slot_owner[s + k] = None
                self.slot_last[s + k] = (u, now[0])
            self.done.add(u)
            self.qr += 1
        return True

    def tick(self):
        if now[0] - self.last_dma >= args.dgap:
            self.step_dma()
        self.step_read()

    def force(self, u):
        guard = 0
        while u not in self.done:
            guard += 1
            assert guard < 10000, "engine stuck"
            nxt = self.order[self.qr]
            if self.rlist is None and (nxt not in self.land or now[0] < self.land[nxt]):
                while self.step_dma(force=True):
                    pass
            if self.step_read(force=True, nmax=99):
                continue
            if not self.step_dma(force=True):
                raise RuntimeError("engine deadlock")

    def release(self, u):
        for c in self.regs[u]:
            self.chunk_busy[c] = None


def make_order():
    wq = [("wq", i) for i in range(14)]
    k = [("k", i) for i in range(16)]
    v = [("v", i) for i in range(16)]
    wo = [("wo", i) for i in range(8)]
    if args.kearly:
        o = wq[:args.kearly]
        rest = wq[args.kearly:]
        ki = 0
        for n, w in enumerate(rest):
            if n % args.kratio == 0:
                o.append(k[ki]); ki += 1
            o.append(w)
        o += k[ki:]
    else:
        o = wq + k
    if args.woearly < 16:
        o += v[:args.woearly]
        wi = 0
        for n, x in enumerate(v[args.woearly:]):
            if n % args.woratio == 0 and wi < 8:
                o.append(wo[wi]); wi += 1
            o.append(x)
        o += wo[wi:]
    else:
        o += v + wo
    return o


eng = Engine(make_order())


def C(text, tag=None):
    E(text, tag)
    eng.tick()


vcount = [0]
def CV(text):
    E(text)
    vcount[0] += 1
    if vcount[0] % 4 == 0:
        eng.tick()


def barrier():
    g.barrier()
    now[0] += 60


M32 = "v_mfma_f32_32x32x16_bf16"
M16 = "v_mfma_f32_16x16x32_bf16"


def bbuf(i):
    return BBUF + (i % 2) * 16


def mfma_step(mf, breads):
    nb = len(breads)
    k0 = 1
    for k, m in enumerate(mf):
        E(m)
        did = False
        if k >= k0 and breads:
            for _ in range(2):
                if breads:
                    E(breads.pop(0)); did = True
        eng.tick()
    for b in breads:
        E(b)


def k1():
    prologue_a()
    stamp()
    dma_x()
    for _ in range(4 * args.init):
        eng.step_dma(force=True)
    stamp()
    prologue_b()
    g.wait_vm("X")
    g.raw("s_barrier")
    now[0] = max(now[0], 3000)
    stamp()
    def xb_reads(G):
        out = []
        bb = bbuf(G)
        for ks2 in range(2):
            ks = 2 * G + ks2
            for nt in range(2):
                off = X_BASE + ((ks >> 2) * 8 + 4 * nt) * 1024
                out.append(f"ds_read_b128 {A(bb + (ks2 * 2 + nt) * 4, 4)}, {V(vRBx + (ks & 3))} offset:{off}")
        return out
    for x in xb_reads(0):
        E(x)
    for G in range(14):
        u = ("wq", G)
        eng.pos = G
        eng.force(u)
        bb = bbuf(G)
        mf = []
        for ks in range(2):
            for mt in range(2):
                for nt in range(2):
                    acc = V(ACC + (mt * 2 + nt) * 16, 16)
                    c = "0" if (G == 0 and ks == 0) else acc
                    mf.append(f"{M32} {acc}, {eng.reg(u, (ks * 2 + mt) * 4, 4)}, {A(bb + (ks * 2 + nt) * 4, 4)}, {c}")
        eng.pos = G + 0.4
        if G + 1 < 14:
            pass
        mfma_step(mf, xb_reads(G + 1) if G + 1 < 14 else [])
        eng.release(u)
    eng.pos = 13.5
    stamp()
    barrier()
    for mt in range(2):
        for nt in range(2):
            acc = ACC + (mt * 2 + nt) * 16
            for tt in range(2):
                tmp = vT + ((mt * 4 + nt * 2 + tt) % 4) * 4
                for k in range(4):
                    E(f"v_cvt_pk_bf16_f32 {V(tmp + k)}, {V(acc + 8 * tt + 2 * k)}, {V(acc + 8 * tt + 2 * k + 1)}")
                C(f"ds_write_b128 {V(vQW)}, {V(tmp, 4)} offset:{X_BASE + (2 * mt + tt) * 2048 + nt * 1024}")
    barrier()
    stamp()
    def q_reads(cg):
        out = []
        for i in range(4):
            ks = cg * 4 + i
            for nt in range(2):
                out.append(f"ds_read_b128 {A(QREG + (ks * 2 + nt) * 4, 4)}, {V(vLin)} offset:{X_BASE + (ks * 2 + nt) * 1024}")
        return out
    for x in q_reads(0):
        E(x)
    for i in range(16):
        u = ("k", i)
        eng.pos = 14 + i
        eng.force(u)
        T, cg = i // 4, i % 4
        mf = []
        for k4 in range(4):
            ks = cg * 4 + k4
            for nt in range(2):
                acc = V(ACC + (T * 2 + nt) * 16, 16)
                c = "0" if ks == 0 else acc
                mf.append(f"{M32} {acc}, {eng.reg(u, k4 * 4, 4)}, {A(QREG + (ks * 2 + nt) * 4, 4)}, {c}")
        eng.pos = 14 + i + 0.4
        mfma_step(mf, q_reads(cg + 1) if (T == 0 and cg < 3) else [])
        eng.release(u)
    eng.pos = 29.6
    stamp()
    def Sreg(T, nt, r):
        return ACC + (T * 2 + nt) * 16 + r
    mx = [vT, vT + 1]
    for nt in range(2):
        vals = [Sreg(T, nt, r) for T in range(4) for r in range(16)]
        ch = [vT + 4 + nt * 4 + k for k in range(4)]
        for k in range(4):
            vs = vals[k * 16:(k + 1) * 16]
            CV(f"v_max3_f32 {V(ch[k])}, {V(vs[0])}, {V(vs[1])}, {V(vs[2])}")
        for step in range(3, 15, 2):
            for k in range(4):
                vs = vals[k * 16:(k + 1) * 16]
                CV(f"v_max3_f32 {V(ch[k])}, {V(ch[k])}, {V(vs[step])}, {V(vs[step + 1])}")
        for k in range(4):
            vs = vals[k * 16:(k + 1) * 16]
            CV(f"v_max_f32 {V(ch[k])}, {V(ch[k])}, {V(vs[15])}")
        CV(f"v_max3_f32 {V(mx[nt])}, {V(ch[0])}, {V(ch[1])}, {V(ch[2])}")
        CV(f"v_max_f32 {V(mx[nt])}, {V(mx[nt])}, {V(ch[3])}")
    E(f"v_permlane32_swap_b32 {V(mx[0])}, {V(mx[1])}")
    E(f"v_max_f32 {V(mx[0])}, {V(mx[0])}, {V(mx[1])}")
    E(f"ds_write_b32 {V(vSTw)}, {V(mx[0])} offset:{STATS}")
    barrier()
    E(f"ds_read_b128 {V(vT + 4, 4)}, {V(vSTr)} offset:{STATS}")
    E(f"ds_read_b128 {V(vT + 8, 4)}, {V(vSTr)} offset:{STATS + 512}")
    for nt in range(2):
        b = vT + 4 + nt * 4
        E(f"v_max3_f32 {V(mx[nt])}, {V(b)}, {V(b + 1)}, {V(b + 2)}")
        E(f"v_max_f32 {V(mx[nt])}, {V(mx[nt])}, {V(b + 3)}")
        E(f"v_mul_f32 {V(mx[nt])}, {S(sC)}, {V(mx[nt])}")
    barrier()
    sm = [vT + 2, vT + 3]
    first = [True, True]
    for T in range(4):
        for nt in range(2):
            for tt in range(2):
                rs = [Sreg(T, nt, 8 * tt + e) for e in range(8)]
                for r in rs:
                    CV(f"v_fma_f32 {V(r)}, {V(r)}, {S(sC)}, -{V(mx[nt])}")
                for r in rs:
                    CV(f"v_exp_f32 {V(r)}, {V(r)}")
                tmp = vT + 4 + ((T * 4 + nt * 2 + tt) % 3) * 4
                for k in range(4):
                    CV(f"v_cvt_pk_bf16_f32 {V(tmp + k)}, {V(rs[2 * k])}, {V(rs[2 * k + 1])}")
                E(f"ds_write_b128 {V(vPW)}, {V(tmp, 4)} offset:{X_BASE + (2 * T + tt) * 2048 + nt * 1024}")
                CV(f"v_pk_add_f32 {V(rs[0], 2)}, {V(rs[0], 2)}, {V(rs[2], 2)}")
                CV(f"v_pk_add_f32 {V(rs[4], 2)}, {V(rs[4], 2)}, {V(rs[6], 2)}")
                CV(f"v_pk_add_f32 {V(rs[0], 2)}, {V(rs[0], 2)}, {V(rs[4], 2)}")
                if first[nt]:
                    CV(f"v_add_f32 {V(sm[nt])}, {V(rs[0])}, {V(rs[1])}")
                    first[nt] = False
                else:
                    CV(f"v_add_f32 {V(rs[0])}, {V(rs[0])}, {V(rs[1])}")
                    CV(f"v_add_f32 {V(sm[nt])}, {V(sm[nt])}, {V(rs[0])}")
    E(f"v_permlane32_swap_b32 {V(sm[0])}, {V(sm[1])}")
    E(f"v_add_f32 {V(sm[0])}, {V(sm[0])}, {V(sm[1])}")
    eng.pos = 29.9
    barrier()
    stamp()
    def p_reads(i):
        out = []
        bb = bbuf(i)
        for ks2 in range(2):
            for nt in range(2):
                off = X_BASE + ((2 * i + ks2) * 2 + nt) * 1024
                out.append(f"ds_read_b128 {A(bb + (ks2 * 2 + nt) * 4, 4)}, {V(vLin)} offset:{off}")
        return out
    for x in p_reads(0):
        E(x)
    for i in range(16):
        u = ("v", i)
        eng.pos = 30 + i
        eng.force(u)
        bb = bbuf(i)
        mf = []
        for ks in range(2):
            for mt in range(2):
                for nt in range(2):
                    acc = V(ACC + (mt * 2 + nt) * 16, 16)
                    c = "0" if (i == 0 and ks == 0) else acc
                    mf.append(f"{M32} {acc}, {eng.reg(u, (ks * 2 + mt) * 4, 4)}, {A(bb + (ks * 2 + nt) * 4, 4)}, {c}")
        eng.pos = 30 + i + 0.4
        mfma_step(mf, p_reads(i + 1) if i + 1 < 16 else [])
        eng.release(u)
    eng.pos = 45.6
    stamp()
    barrier()
    E(f"ds_write_b32 {V(vSTw)}, {V(sm[0])} offset:{SUMS}")
    for mt in range(2):
        for nt in range(2):
            acc = ACC + (mt * 2 + nt) * 16
            for tt in range(2):
                tmp = vT + ((mt * 4 + nt * 2 + tt) % 3) * 4 + 4
                for k in range(4):
                    E(f"v_cvt_pk_bf16_f32 {V(tmp + k)}, {V(acc + 8 * tt + 2 * k)}, {V(acc + 8 * tt + 2 * k + 1)}")
                C(f"ds_write_b128 {V(vOW if mt == 0 else vOW2)}, {V(tmp, 4)} offset:{X_BASE + nt * 2048 + tt * 512}")
    barrier()
    stamp()
    def o_reads(s):
        return [f"ds_read_b128 {A(bbuf(s) + u * 4, 4)}, {V(vLin)} offset:{X_BASE + (s * 4 + u) * 1024}" for u in range(4)]
    for x in o_reads(0):
        E(x)
    for u4 in range(4):
        E(f"ds_read_b128 {V(vT + u4 * 4, 4)}, {V(vSMr)} offset:{SUMS + u4 * 256}")
    fl = (" " + args.stsc) if args.stsc else ""
    def store_tile(m, up):
        out = []
        a0 = ACC + (m * 4 + 2 * up) * 4
        for h in range(2):
            rinv = V(vT + (2 * up + h) * 4)
            for k in range(4):
                out.append(f"v_mul_f32 {V(a0 + 4 * h + k)}, {V(a0 + 4 * h + k)}, {rinv}")
        for k in range(4):
            out.append(f"v_cvt_pk_bf16_f32 {V(a0 + k)}, {V(a0 + 2 * k)}, {V(a0 + 2 * k + 1)}")
        j = m * 2 + up
        out.append(f"buffer_store_dwordx4 {V(a0, 4)}, {V(vOut)}, {S(SRD_P, 4)}, {S(sST + j // 4)} offen offset:{(j % 4) * 1024}{fl}")
        return out
    for s in range(8):
        u = ("wo", s)
        eng.pos = 46 + s
        eng.force(u)
        bb = bbuf(s)
        mf = []
        for m in range(7):
            for u4 in range(4):
                acc = V(ACC + (m * 4 + u4) * 4, 4)
                c = "0" if s == 0 else acc
                mf.append(f"{M16} {acc}, {eng.reg(u, m * 4, 4)}, {A(bb + u4 * 4, 4)}, {c}")
        eng.pos = 46 + s + 0.4
        if s < 7:
            extra = o_reads(s + 1)
            if s == 0:
                for u4 in range(4):
                    b = vT + u4 * 4
                    extra += [f"v_add_f32 {V(b)}, {V(b)}, {V(b + 1)}", f"v_add_f32 {V(b + 2)}, {V(b + 2)}, {V(b + 3)}",
                              f"v_add_f32 {V(b)}, {V(b)}, {V(b + 2)}", f"v_rcp_f32 {V(b)}, {V(b)}"]
            for k, m in enumerate(mf):
                E(m)
                if k >= 2 and extra:
                    E(extra.pop(0))
                if k % 2:
                    eng.tick()
            for x in extra:
                E(x)
        else:
            pend = []
            for k, mm in enumerate(mf):
                E(mm)
                m, u4 = k // 4, k % 4
                if u4 == 0 and m >= 2:
                    pend += store_tile(m - 2, 0) + store_tile(m - 2, 1)
                for _ in range(7):
                    if pend:
                        E(pend.pop(0))
            for x in pend:
                E(x)
            stamp()
            for m in (5, 6):
                for up in range(2):
                    for x in store_tile(m, up):
                        E(x)
        eng.release(u)
    if args.stamps:
        g.wait_vm()
        stamp()
        n = stamp_n[0]
        E(f"v_mov_b32 {V(vT)}, 0")
        E(f"v_accvgpr_read_b32 {V(vT + 3)}, {A(STAMP_A)}")
        for k in range(n):
            E(f"v_accvgpr_read_b32 {V(vT + 1)}, {A(STAMP_A + k)}")
            E(f"v_sub_u32 {V(vT + 1)}, {V(vT + 1)}, {V(vT + 3)}")
            E(f"v_cmp_eq_u32 vcc, {k}, {V(vL)}")
            E(f"v_cndmask_b32 {V(vT)}, {V(vT)}, {V(vT + 1)}, vcc")
        E(f"v_lshlrev_b32 {V(vT + 2)}, 2, v0")
        E(f"buffer_store_dword {V(vT)}, {V(vT + 2)}, {S(SRD_D, 4)}, 0 offen")
    if args.dbgtime:
        g.wait_vm()
        g.raw("s_memtime s[88:89]")
        g.raw("s_memrealtime s[90:91]")
        g.raw("s_waitcnt lgkmcnt(0)")
        E("s_mul_hi_u32 s80, s2, 50529028")
        E("s_mul_i32 s81, s80, 85")
        E("s_cmp_eq_u32 s81, s2")
        g.raw("s_cbranch_scc0 K1_END")
        E("s_sub_u32 s88, s88, s96")
        E(f"v_mov_b32 {V(vT)}, s88")
        E(f"v_mov_b32 {V(vT + 1)}, s98")
        E(f"v_mov_b32 {V(vT + 2)}, s90")
        E(f"v_mov_b32 {V(vT + 3)}, s2")
        E("s_lshl_b32 s80, s80, 4")
        E(f"s_add_u32 s80, s80, {100 << 20}")
        E(f"v_mov_b32 {V(vT + 4)}, s80")
        E("v_cmp_eq_u32 vcc, 0, v0")
        g.raw("s_nop 4")
        g.raw("s_and_saveexec_b64 s[82:83], vcc")
        g.raw("s_cbranch_execz K1_END")
        E(f"global_store_dwordx4 {V(vT + 4)}, {V(vT, 4)}, {S(sPTR + 24, 2)}")
    g.raw("K1_END:")
    g.raw("s_endpgm")


def k2():
    h = Gen()
    e = h.emit
    h.raw("s_cmp_ge_u32 s2, 896")
    h.raw("s_cbranch_scc1 K2_END")
    h.raw("s_load_dwordx2 s[4:5], s[0:1], 80")
    h.raw("s_load_dwordx2 s[6:7], s[0:1], 96")
    if args.dbgtime:
        h.raw("s_load_dwordx2 s[40:41], s[0:1], 88")
        h.raw("s_memrealtime s[42:43]")
    e("s_mul_hi_u32 s3, s2, 0x4924925")
    e("s_mul_i32 s8, s3, 56")
    e("s_sub_u32 s8, s2, s8")
    e("v_lshlrev_b32 v2, 4, v0")
    e("s_lshl_b32 s9, s8, 10")
    e("v_add_u32 v2, s9, v2")
    e(f"s_mul_i32 s12, s3, {16 * PART_BYTES}")
    for hh in range(16):
        e(f"s_mov_b32 s{24 + hh}, {hh * PART_BYTES}")
    e(f"s_mov_b32 s18, {16 * PART_BYTES}")
    e("s_mov_b32 s19, 0x00020000")
    h.raw("s_waitcnt lgkmcnt(0)")
    e("s_add_u32 s16, s6, s12")
    e("s_addc_u32 s17, s7, 0")
    e("s_and_b32 s17, s17, 0xffff")
    for hh in range(16):
        e(f"buffer_load_dwordx4 {V(16 + hh * 4, 4)}, v2, s[16:19], s{24 + hh} offen")
    e("s_mul_i32 s9, s8, 4682")
    e("s_lshr_b32 s9, s9, 16")
    e("s_mul_i32 s13, s9, 14")
    e("s_sub_u32 s13, s8, s13")
    e("s_lshr_b32 s14, s13, 1")
    e("s_and_b32 s13, s13, 1")
    e("s_and_b32 s10, s3, 7")
    e("s_lshr_b32 s11, s3, 3")
    e("s_mul_i32 s10, s10, 114688")
    e("s_mul_i32 s11, s11, 896")
    e("s_add_u32 s10, s10, s11")
    e("s_mul_i32 s11, s13, 57344")
    e("s_add_u32 s10, s10, s11")
    e("s_mul_i32 s11, s9, 224")
    e("s_add_u32 s10, s10, s11")
    e("s_lshl_b32 s11, s14, 5")
    e("s_add_u32 s10, s10, s11")
    e("v_and_b32 v3, 15, v0")
    e("v_lshrrev_b32 v4, 4, v0")
    e("v_mul_u32_u24 v3, 1792, v3")
    e("v_lshl_add_u32 v3, v4, 3, v3")
    e("v_add_u32 v3, s10, v3")
    e("s_mov_b32 s15, 28672")
    e("s_mov_b32 s20, s4")
    e("s_and_b32 s21, s5, 0xffff")
    e(f"s_mov_b32 s22, {8 * 64 * 896 * 2}")
    e("s_mov_b32 s23, 0x00020000")
    for hh in range(16):
        for k in range(4):
            src = 16 + hh * 4 + k
            if hh == 0:
                e(f"v_lshlrev_b32 {V(8 + 2 * k)}, 16, {V(src)}")
                e(f"v_and_b32 {V(9 + 2 * k)}, 0xffff0000, {V(src)}")
            else:
                e(f"v_lshlrev_b32 {V(4 + (k % 2) * 2)}, 16, {V(src)}")
                e(f"v_and_b32 {V(5 + (k % 2) * 2)}, 0xffff0000, {V(src)}")
                e(f"v_pk_add_f32 {V(8 + 2 * k, 2)}, {V(8 + 2 * k, 2)}, {V(4 + (k % 2) * 2, 2)}")
    for k in range(4):
        e(f"v_cvt_pk_bf16_f32 {V(4 + k)}, {V(8 + 2 * k)}, {V(9 + 2 * k)}")
    nv = 80
    e("buffer_store_dwordx2 v[4:5], v3, s[20:23], 0 offen")
    e("buffer_store_dwordx2 v[6:7], v3, s[20:23], s15 offen")
    if args.dbgtime:
        h.wait_vm()
        h.raw("s_memrealtime s[44:45]")
        h.raw("s_waitcnt lgkmcnt(0)")
        e("s_cmp_eq_u32 s2, 895")
        h.raw("s_cbranch_scc0 K2_END")
        e("v_lshlrev_b32 v1, 2, v0")
        e(f"v_add_u32 v2, {100 << 20}, v1")
        e("v_cmp_gt_u32 vcc, 16, v0")
        h.raw("s_nop 4")
        h.raw("s_and_saveexec_b64 s[46:47], vcc")
        h.raw("s_cbranch_execz K2_END")
        e("global_load_dword v3, v2, s[6:7]")
        e("v_mov_b32 v4, s42")
        e("v_cmp_eq_u32 vcc, 3, v0")
        e("v_cndmask_b32 v3, v3, v4, vcc")
        e("v_mov_b32 v4, s44")
        e("v_cmp_eq_u32 vcc, 7, v0")
        e("v_cndmask_b32 v3, v3, v4, vcc")
        e("global_store_dword v1, v3, s[40:41]")
    h.raw("K2_END:")
    h.raw("s_endpgm")
    return h.finish(), nv


k1()
body1 = g.finish()
nins = sum(1 for l in body1.splitlines() if l.strip() and not l.strip().startswith(';') and not l.strip().endswith(':'))
body2, nv2 = k2()

desc = lambda name, nv, acc, ns: f""".p2align 6
.amdhsa_kernel {name}
  .amdhsa_next_free_vgpr {nv}
  .amdhsa_next_free_sgpr {ns}
  .amdhsa_accum_offset {acc}
  .amdhsa_group_segment_fixed_size 0
  .amdhsa_kernarg_size 104
  .amdhsa_user_sgpr_count 2
  .amdhsa_user_sgpr_kernarg_segment_ptr 1
  .amdhsa_system_sgpr_workgroup_id_x 1
.end_amdhsa_kernel
"""
K1 = NAME + "_kernel"
K2 = "reduce_partials_kernel"
txt = HEADER
txt += f"; @launch kernel={K1} grid=(256,1,1) block=(256,1,1) lds={LDS_BYTES}\n"
if not args.nok2:
    txt += f"; @launch kernel={K2} grid=(896,1,1) block=(64,1,1) lds=0\n"
txt += f""".amdgcn_target "amdgcn-amd-amdhsa--gfx950"
.text
.globl {K1}
.p2align 8
.type {K1},@function
{K1}:
{body1}
.globl {K2}
.p2align 8
.type {K2},@function
{K2}:
{body2}
CODE_END:
.fill 64, 4, 0xbf800000
.section .rodata,"a"
{desc(K1, 512, 256, 102)}
{desc(K2, nv2, (nv2 + 3) // 4 * 4, 48)}
"""
open(args.o, "w").write(txt)
print(f"wrote {args.o}: k1 {nins} instrs, est {now[0]:.0f} cycles")
```

```python
import sys, math, argparse, struct
from asmgen import Gen, V, A, S, R

NAME = "concat_heads__gqa_block_cached__gqa_block_cached__near_ridge"
HEADER = open("cdna_kernels/" + NAME + ".s.ref").read().split("; Override launch")[0]

ap = argparse.ArgumentParser()
ap.add_argument("-o", default="k.s")
ap.add_argument("--stamps", action="store_true")
ap.add_argument("--dbgtime", action="store_true")
ap.add_argument("--nok2", action="store_true")
ap.add_argument("--kvfl", default="nt")
ap.add_argument("--stsc", default="sc1")
ap.add_argument("--nopf", action="store_true")
ap.add_argument("--rot", type=int, default=1)
ap.add_argument("--latw", type=int, default=1500)
ap.add_argument("--latk", type=int, default=2000)
ap.add_argument("--dgap", type=int, default=20)
ap.add_argument("--pacew", type=int, default=300)
ap.add_argument("--pacek", type=int, default=580)
ap.add_argument("--xrot", type=int, default=1)
ap.add_argument("--wowarm", type=int, default=1)
ap.add_argument("--smov", type=int, default=1)
ap.add_argument("--rdtick", type=int, default=4)
ap.add_argument("--b32", type=int, default=4)
ap.add_argument("--b16", type=int, default=2)
ap.add_argument("--xper", type=int, default=3)
ap.add_argument("--init", type=int, default=3, help="units DMA'd before waiting for x")
ap.add_argument("--kearly", type=int, default=0, help="interleave K units into the wq stream starting after this many wq units (0=off)")
ap.add_argument("--kratio", type=int, default=1)
ap.add_argument("--woearly", type=int, default=16)
ap.add_argument("--woratio", type=int, default=1)
ap.add_argument("--noabsorb", action="store_true")
ap.add_argument("--verbose", action="store_true")
ap.add_argument("--fused", type=int, default=0)
ap.add_argument("--maxpoll", type=int, default=400)
ap.add_argument("--sleep", type=int, default=2)
ap.add_argument("--nomfma", action="store_true")
ap.add_argument("--novalu", action="store_true")
ap.add_argument("--skip", default="", help="timing experiments: comma list of streams whose DMAs are dropped")
args = ap.parse_args()

PART_BYTES = 64 * 448 * 2

X_BASE = 0
STATS = 57344
SUMS = 32768
RING0 = 65536
NSLOT = 6
RING_W = NSLOT * 4096
LDS_BYTES = RING0 + 4 * RING_W
assert LDS_BYTES <= 163840

sW, sRING, sOFF, sC = 4, 5, 6, 7
SRD_X, SRD_WQ, SRD_K, SRD_V, SRD_WO, SRD_P = 8, 12, 16, 20, 24, 28
sB, sH, sBR, sKV = 32, 33, 34, 35
sPTR = 36
sPC = 62
sT0, sT1, sT2, sT3 = 64, 65, 66, 67
sST = 68
SRD_D = 72
sTM = 76
sROT8 = 78
sRQ = 80
sRO = 88

vL = 1
vXD = 2
vWD = 4
vKD = 8
vVD = 12
vOD = 16
vRBx = 20
vRBk = 24
vTRw = 28
vTRv = 30
vTRo = 32
vLin = 39
vQW = 40
vPW = 41
vOW = 42
vSTw = 43
vSTr = 44
vOW2 = 45
vSMr = 46
vOut = 47
vT = 48
ACC = 128
BBUF = 128
QREG = 0
STAMP_A = 240

g = Gen()
now = [0.0]
shadow = [0.0]


def cost_of(text):
    op = text.split()[0]
    if op.startswith("v_mfma"):
        return None
    if op in ("v_exp_f32", "v_rcp_f32"):
        return 8
    if op.startswith("v_") or op.startswith("s_"):
        return 4
    if op.startswith("ds_write"):
        return 16
    if op.startswith("ds_"):
        return 6
    return 12


def E(text, tag=None):
    drop = (args.nomfma and text.startswith("v_mfma")) or (args.novalu and text.split()[0] in ("v_exp_f32", "v_fma_f32", "v_max3_f32", "v_pk_add_f32"))
    if tag and isinstance(tag, tuple) and tag[0] == "G" and tag[1][0] in args.skip.split(","):
        drop = True
    if not drop:
        g.emit(text, tag)
    c = cost_of(text)
    if c is None:
        m = 32 if "32x32" in text else 16
        now[0] += max(shadow[0], 0) + 8
        shadow[0] = m - 8
    else:
        use = min(c, max(shadow[0], 0))
        shadow[0] -= use
        now[0] += c


def f32bits(x):
    return struct.unpack("<I", struct.pack("<f", x))[0]


stamp_n = [0]
def stamp():
    if not args.stamps:
        return
    k = stamp_n[0]; stamp_n[0] += 1
    assert k < 15
    g.raw(f"s_memtime {S(sTM, 2)}")
    g.raw("s_waitcnt lgkmcnt(0)")
    g.lg = []
    E(f"v_accvgpr_write_b32 {A(STAMP_A + k)}, {S(sTM)}")


def srd(base, ptr, off_sreg, nrec):
    E(f"s_add_u32 {S(base)}, {S(ptr)}, {S(off_sreg)}")
    E(f"s_addc_u32 {S(base + 1)}, {S(ptr + 1)}, 0")
    E(f"s_and_b32 {S(base + 1)}, {S(base + 1)}, 0xffff")
    if isinstance(nrec, int):
        E(f"s_mov_b32 {S(base + 2)}, {nrec}")
    else:
        E(f"s_sub_u32 {S(base + 2)}, {nrec[0]}, {S(nrec[1])}")
    E(f"s_mov_b32 {S(base + 3)}, 0x00020000")


t = [vT + 4 + i for i in range(10)]
l3, l7, l4 = t[0], t[1], t[2]


def prologue_a():
    g.raw("s_cmp_ge_u32 s2, 256")
    g.raw("s_cbranch_scc1 K1_END")
    if args.dbgtime:
        g.raw("s_memtime s[96:97]")
        g.raw("s_memrealtime s[98:99]")
    stamp()
    g.raw(f"s_load_dwordx16 {S(sPTR, 16)}, s[0:1], 0")
    g.raw(f"s_load_dwordx8 {S(sPTR + 16, 8)}, s[0:1], 64")
    g.raw(f"s_load_dwordx2 {S(sPTR + 24, 2)}, s[0:1], 96")
    if not args.nopf:
        E(f"s_getpc_b64 {S(sPC, 2)}")
        g.raw("K1_PC:")
        E(f"v_lshlrev_b32 {V(vT)}, 7, v0")
        E(f"v_min_u32 {V(vT + 2)}, CODE_END-K1_PC-4, {V(vT)}")
        E(f"global_load_dword {V(vT + 1)}, {V(vT + 2)}, {S(sPC, 2)}", tag="pf")
    E(f"v_and_b32 {V(vL)}, 63, v0")
    E(f"v_lshrrev_b32 {V(vT + 3)}, 6, v0")
    E(f"v_readfirstlane_b32 {S(sW)}, {V(vT + 3)}")
    E(f"s_and_b32 {S(sT0)}, s2, 7")
    E(f"s_lshr_b32 {S(sT1)}, s2, 3")
    E(f"s_lshr_b32 {S(sT2)}, {S(sT1)}, 4")
    E(f"s_lshl_b32 {S(sT0)}, {S(sT0)}, 1")
    E(f"s_add_u32 {S(sT0)}, {S(sT0)}, {S(sT2)}")
    E(f"s_lshr_b32 {S(sBR)}, {S(sT0)}, 3")
    E(f"s_and_b32 {S(sKV)}, {S(sT0)}, 7")
    E(f"s_lshr_b32 {S(sB)}, {S(sT1)}, 1")
    E(f"s_and_b32 {S(sB)}, {S(sB)}, 7")
    E(f"s_and_b32 {S(sT2)}, {S(sT1)}, 1")
    E(f"s_lshl_b32 {S(sH)}, {S(sKV)}, 1")
    E(f"s_add_u32 {S(sH)}, {S(sH)}, {S(sT2)}")
    E(f"s_mul_i32 {S(sRING)}, {S(sW)}, {RING_W}")
    E(f"s_add_u32 {S(sRING)}, {S(sRING)}, {RING0}")
    if args.rot:
        E(f"s_cmp_eq_u32 {S(sB)}, 7")
        E(f"s_cselect_b32 {S(sT0)}, 3, {S(sB)}")
    else:
        E(f"s_mov_b32 {S(sT0)}, 0")
    for i in range(7):
        E(f"s_add_u32 {S(sT1)}, {S(sT0)}, {i}")
        E(f"s_sub_u32 {S(sT2)}, {S(sT1)}, 7")
        E(f"s_cmp_ge_u32 {S(sT1)}, 7")
        E(f"s_cselect_b32 {S(sT1)}, {S(sT2)}, {S(sT1)}")
        E(f"s_lshl_b32 {S(sRQ + i)}, {S(sT1)}, 19")
    l = V(vL)
    E(f"v_lshrrev_b32 {V(l3)}, 3, {l}")
    E(f"v_and_b32 {V(l7)}, 7, {l}")
    E(f"v_lshrrev_b32 {V(l4)}, 4, {l}")
    E(f"s_lshl_b32 {S(sT3)}, {S(sW)}, 7")
    E(f"s_mul_i32 {S(sT0)}, {S(sW)}, {16 * 896}")
    E(f"v_mul_u32_u24 {V(t[4])}, 896, {V(l3)}")
    E(f"v_add_u32 {V(t[4])}, {S(sT0)}, {V(t[4])}")
    E(f"v_xor_b32 {V(t[5])}, {V(l7)}, {V(l4)}")
    E(f"v_lshl_add_u32 {V(vXD)}, {V(t[5])}, 4, {V(t[4])}")
    E(f"v_xor_b32 {V(t[6])}, 4, {V(t[5])}")
    E(f"v_lshl_add_u32 {V(vXD + 1)}, {V(t[6])}, 4, {V(t[4])}")
    E(f"v_add_u32 {V(vXD + 1)}, {8 * 896}, {V(vXD + 1)}")
    E(f"s_lshl_b32 {S(sT0)}, {S(sW)}, 16")
    E(f"v_lshl_add_u32 {V(t[4])}, {V(l3)}, 9, {S(sT0)}")
    for j in range(4):
        E(f"v_lshl_add_u32 {V(vKD + j)}, {V(t[5] if j % 2 == 0 else t[6])}, 4, {V(t[4])}")
        if j:
            E(f"v_add_u32 {V(vKD + j)}, {j * 3072}, {V(vKD + j)}")
    E(f"v_and_b32 {V(t[7])}, 1, {V(l4)}")
    E(f"v_lshlrev_b32 {V(t[7])}, 2, {V(t[7])}")
    E(f"v_xor_b32 {V(t[7])}, {V(l7)}, {V(t[7])}")
    E(f"v_lshl_add_u32 {V(t[7])}, {V(t[7])}, 4, {S(sT3)}")
    E(f"v_lshl_add_u32 {V(vWD)}, {V(l3)}, 13, {V(t[7])}")
    E(f"v_lshl_add_u32 {V(vVD)}, {V(l3)}, 9, {V(t[7])}")
    for j in range(1, 4):
        E(f"v_add_u32 {V(vWD + j)}, {j * (65536 - 1024)}, {V(vWD)}")
        E(f"v_add_u32 {V(vVD + j)}, {j * 3072}, {V(vVD)}")
    g.raw("s_waitcnt lgkmcnt(0)")
    E(f"s_cmp_eq_u32 {S(sBR)}, 0")
    for i in range(0, 10, 2):
        E(f"s_cselect_b64 {S(sPTR + i, 2)}, {S(sPTR + i, 2)}, {S(sPTR + 10 + i, 2)}")
    E(f"s_mul_i32 {S(sT0)}, {S(sB)}, 57344")
    srd(SRD_X, sPTR + 0, sT0, 57344)
    E(f"s_lshl_b32 {S(sT0)}, {S(sH)}, 9")
    srd(SRD_WQ, sPTR + 6, sT0, (448 * 8192, sT0))
    E(f"s_lshl_b32 {S(sT0)}, {S(sB)}, 3")
    E(f"s_add_u32 {S(sT0)}, {S(sT0)}, {S(sKV)}")
    E(f"s_lshl_b32 {S(sT0)}, {S(sT0)}, 18")
    srd(SRD_K, sPTR + 2, sT0, 262144)
    srd(SRD_V, sPTR + 4, sT0, 262144)


def prologue_b():
    l = V(vL)
    E(f"s_mov_b32 {S(sC)}, 0x{f32bits(math.log2(math.e) / 16.0):08x}")
    E(f"s_mul_i32 {S(sT0)}, {S(sH)}, 229376")
    srd(SRD_WO, sPTR + 8, sT0, 229376)
    E(f"s_lshl_b32 {S(sT0)}, {S(sBR)}, 3")
    E(f"s_add_u32 {S(sT0)}, {S(sT0)}, {S(sB)}")
    E(f"s_lshl_b32 {S(sT0)}, {S(sT0)}, 4")
    E(f"s_add_u32 {S(sT0)}, {S(sT0)}, {S(sH)}")
    E(f"s_mul_i32 {S(sT1)}, {S(sT0)}, {PART_BYTES}")
    srd(SRD_P, sPTR + 24, sT1, PART_BYTES)
    if args.stamps:
        E(f"s_lshl_b32 {S(sT1)}, {S(sT0)}, 16")
        E(f"s_add_u32 {S(sT1)}, {S(sT1)}, {64 << 20}")
        srd(SRD_D, sPTR + 24, sT1, 65536)
    for u in range(4):
        E(f"s_mov_b32 {S(sST + u)}, {u * 4096}")
    E(f"s_mov_b32 {S(sROT8)}, {S(sB)}" if args.rot else f"s_mov_b32 {S(sROT8)}, 0")
    for i in range(8):
        E(f"s_add_u32 {S(sT1)}, {S(sROT8)}, {i}")
        E(f"s_and_b32 {S(sT1)}, {S(sT1)}, 7")
        E(f"s_mul_i32 {S(sRO + i)}, {S(sT1)}, 28672")
    E(f"v_bfe_u32 {V(t[4])}, {l}, 1, 3")
    E(f"v_xor_b32 {V(t[4])}, {V(t[4])}, {V(l4)}")
    E(f"v_xor_b32 {V(t[5])}, 4, {V(t[4])}")
    E(f"v_min_u32 {V(t[4])}, 6, {V(t[4])}")
    E(f"v_min_u32 {V(t[5])}, 6, {V(t[5])}")
    E(f"v_and_b32 {V(t[6])}, 1, {l}")
    E(f"v_lshlrev_b32 {V(t[6])}, 4, {V(t[6])}")
    E(f"v_mul_u32_u24 {V(t[7])}, 896, {V(l4)}")
    E(f"s_mul_i32 {S(sT0)}, {S(sW)}, 224")
    E(f"v_add3_u32 {V(t[6])}, {V(t[6])}, {V(t[7])}, {S(sT0)}")
    for j in range(4):
        E(f"v_lshl_add_u32 {V(vOD + j)}, {V(t[4] if j < 2 else t[5])}, 5, {V(t[6])}")
        if j:
            E(f"v_add_u32 {V(vOD + j)}, {j * (3584 - 1024)}, {V(vOD + j)}")
    n, hf = t[4], t[5]
    E(f"v_and_b32 {V(n)}, 31, {l}")
    E(f"v_lshrrev_b32 {V(hf)}, 5, {l}")
    E(f"v_lshrrev_b32 {V(t[6])}, 3, {V(n)}")
    E(f"v_lshlrev_b32 {V(t[6])}, 10, {V(t[6])}")
    E(f"v_lshl_add_u32 {V(t[6])}, {V(l7)}, 7, {V(t[6])}")
    E(f"v_bfe_u32 {V(t[7])}, {V(n)}, 1, 3")
    E(f"v_xor_b32 {V(t[7])}, {V(t[7])}, {V(hf)}")
    for i in range(4):
        E(f"v_xor_b32 {V(t[8])}, {2 * i}, {V(t[7])}")
        E(f"v_lshl_add_u32 {V(vRBx + i)}, {V(t[8])}, 4, {V(t[6])}")
        E(f"v_add_u32 {V(vRBk + i)}, {S(sRING)}, {V(vRBx + i)}")
    r, c = t[6], t[7]
    E(f"v_bfe_u32 {V(r)}, {l}, 2, 2")
    E(f"v_and_b32 {V(c)}, 3, {l}")
    E(f"v_lshlrev_b32 {V(t[8])}, 7, {V(r)}")
    E(f"v_lshrrev_b32 {V(t[9])}, 1, {V(r)}")
    E(f"v_lshl_add_u32 {V(t[8])}, {V(t[9])}, 6, {V(t[8])}")
    E(f"v_and_b32 {V(t[9])}, 1, {V(l4)}")
    E(f"v_lshl_add_u32 {V(t[8])}, {V(t[9])}, 5, {V(t[8])}")
    E(f"v_and_b32 {V(t[9])}, 1, {V(c)}")
    E(f"v_lshl_add_u32 {V(t[8])}, {V(t[9])}, 4, {V(t[8])}")
    E(f"v_lshrrev_b32 {V(t[9])}, 1, {V(c)}")
    E(f"v_lshl_add_u32 {V(t[8])}, {V(t[9])}, 3, {V(t[8])}")
    E(f"v_add_u32 {V(t[8])}, {S(sRING)}, {V(t[8])}")
    E(f"v_lshl_add_u32 {V(vTRw)}, {V(hf)}, 10, {V(t[8])}")
    E(f"v_xor_b32 {V(vTRw + 1)}, 64, {V(vTRw)}")
    E(f"v_lshl_add_u32 {V(vTRv)}, {V(hf)}, 9, {V(t[8])}")
    E(f"v_xor_b32 {V(vTRv + 1)}, 64, {V(vTRv)}")
    E(f"v_lshlrev_b32 {V(t[8])}, 11, {V(l4)}")
    E(f"v_lshl_add_u32 {V(t[8])}, {V(r)}, 8, {V(t[8])}")
    E(f"v_lshl_add_u32 {V(t[8])}, {V(c)}, 3, {V(t[8])}")
    E(f"v_add_u32 {V(t[8])}, {S(sRING)}, {V(t[8])}")
    E(f"v_and_b32 {V(t[9])}, 1, {V(l4)}")
    E(f"v_lshl_or_b32 {V(t[9])}, {V(t[9])}, 2, {V(r)}")
    E(f"v_lshl_add_u32 {V(vTRo)}, {V(t[9])}, 5, {V(t[8])}")
    for m in range(1, 7):
        E(f"v_xor_b32 {V(vTRo + m)}, {m * 32}, {V(vTRo)}")
    E(f"v_lshlrev_b32 {V(vLin)}, 4, {l}")
    E(f"s_lshl_b32 {S(sT0)}, {S(sW)}, 13")
    E(f"v_add_u32 {V(vQW)}, {S(sT0)}, {V(vLin)}")
    E(f"s_lshl_b32 {S(sT1)}, {S(sW)}, 14")
    E(f"v_add_u32 {V(vPW)}, {S(sT1)}, {V(vLin)}")
    E(f"v_lshrrev_b32 {V(t[8])}, 4, {V(n)}")
    E(f"v_lshlrev_b32 {V(t[8])}, 10, {V(t[8])}")
    E(f"v_lshl_add_u32 {V(t[8])}, {V(hf)}, 8, {V(t[8])}")
    E(f"v_and_b32 {V(t[9])}, 15, {l}")
    E(f"v_lshl_add_u32 {V(t[8])}, {V(t[9])}, 4, {V(t[8])}")
    for mt in range(2):
        E(f"s_lshl_b32 {S(sT1)}, {S(sW)}, 1")
        E(f"s_add_u32 {S(sT1)}, {S(sT1)}, {8 + mt}")
        E(f"s_sub_u32 {S(sT1)}, {S(sT1)}, {S(sROT8)}")
        E(f"s_and_b32 {S(sT1)}, {S(sT1)}, 7")
        E(f"s_lshl_b32 {S(sT1)}, {S(sT1)}, 12")
        E(f"v_add_u32 {V(vOW if mt == 0 else vOW2)}, {S(sT1)}, {V(t[8])}")
    E(f"s_lshl_b32 {S(sT0)}, {S(sW)}, 2")
    E(f"v_add_u32 {V(vSTw)}, {S(sT0)}, {V(vLin)}")
    E(f"v_lshlrev_b32 {V(vSTr)}, 4, {V(n)}")
    E(f"v_lshlrev_b32 {V(vSMr)}, 4, {V(t[9])}")
    E(f"s_mul_i32 {S(sT0)}, {S(sW)}, 14336")
    E(f"v_add_u32 {V(vOut)}, {S(sT0)}, {V(vLin)}")


def dma_x():
    E(f"s_lshl_b32 {S(sT0)}, {S(sW)}, 11")
    if not args.xrot:
        for cg in range(7):
            E(f"s_lshr_b32 {S(sOFF)}, {S(sRQ + cg)}, 12")
            for par in range(2):
                E(f"s_add_u32 m0, {S(sT0)}, {X_BASE + (cg * 8 + par) * 1024}")
                E(f"buffer_load_dwordx4 {V(vXD + par)}, {S(SRD_X, 4)}, {S(sOFF)} offen lds", tag="X")
        return
    E(f"s_mul_i32 {S(sT1)}, {S(sH)}, 37")
    E(f"s_lshr_b32 {S(sT1)}, {S(sT1)}, 8")
    E(f"s_mul_i32 {S(sT1)}, {S(sT1)}, 7")
    E(f"s_sub_u32 {S(sT1)}, {S(sH)}, {S(sT1)}")
    E(f"s_lshr_b32 {S(sT2)}, {S(sRQ)}, 19")
    E(f"s_add_u32 {S(sT2)}, {S(sT2)}, {S(sT1)}")
    E(f"s_sub_u32 {S(sT3)}, {S(sT2)}, 7")
    E(f"s_cmp_ge_u32 {S(sT2)}, 7")
    E(f"s_cselect_b32 {S(sT2)}, {S(sT3)}, {S(sT2)}")
    for i in range(7):
        E(f"s_lshl_b32 {S(sOFF)}, {S(sT2)}, 7")
        E(f"s_lshl_b32 {S(sT3)}, {S(sT1)}, 13")
        E(f"s_add_u32 m0, {S(sT3)}, {S(sT0)}")
        E(f"buffer_load_dwordx4 {V(vXD)}, {S(SRD_X, 4)}, {S(sOFF)} offen lds", tag="X")
        E(f"s_add_u32 m0, m0, 1024")
        if i < 6:
            E(f"s_add_u32 {S(sT1)}, {S(sT1)}, 1")
            E(f"s_cmp_eq_u32 {S(sT1)}, 7")
            E(f"s_cselect_b32 {S(sT1)}, 0, {S(sT1)}")
        E(f"buffer_load_dwordx4 {V(vXD + 1)}, {S(SRD_X, 4)}, {S(sOFF)} offen lds", tag="X")
        if i < 6:
            E(f"s_add_u32 {S(sT2)}, {S(sT2)}, 1")
            E(f"s_cmp_eq_u32 {S(sT2)}, 7")
            E(f"s_cselect_b32 {S(sT2)}, 0, {S(sT2)}")


def cons_pos(u):
    k, i = u
    return {"wq": 0, "k": 14, "v": 30, "wo": 46}[k] + i


INF = 1e9
chunks = []
for b in range(64, 128, 16):
    chunks.append(("v", b, [(0, INF)]))
for b in range(160, 240, 16):
    chunks.append(("a", b, [(0, INF)]))
for b in range(0, 128, 16):
    chunks.append(("a", b, [(0, 13.5), (29.6, INF)]))
for b in range(192, 240, 16):
    chunks.append(("v", b, [(0, 22), (29.9, 46)]))
chunks.append(("v", 240, [(0, 22), (29.9, INF)]))


class Engine:
    def __init__(self, order):
        self.order = order
        self.qd = 0; self.dsub = 0
        self.qr = 0; self.rsub = 0
        self.slot_owner = [None] * NSLOT
        self.slot_last = [None] * NSLOT
        self.slot = {}; self.tdma = {}; self.regs = {}; self.done = set()
        self.chunk_busy = [None] * len(chunks)
        self.last_dma = -INF
        self.pos = 0.0
        self.rlist = None
        self.land = {}
        self.setup_done = False
        self.last_land = 3000

    def nblk(self, u): return 8 if u[0] == "wo" else 4

    def find_slots(self, u, force):
        need = 2 if u[0] == "wo" else 1
        best = None
        for s in range(0, NSLOT, need):
            if all(self.slot_owner[s + k] is None for k in range(need)):
                tl = max((self.slot_last[s + k][1] if self.slot_last[s + k] else -INF) for k in range(need))
                if not force and now[0] - tl < 100:
                    continue
                if best is None or tl < best[1]:
                    best = (s, tl)
        return None if best is None else best[0]

    def find_chunks(self, u):
        need = 2 if u[0] == "wo" else 1
        cp = cons_pos(u)
        cand = []
        for i, (k, b, wins) in enumerate(chunks):
            if self.chunk_busy[i] is not None:
                continue
            for (a, z) in wins:
                if a <= self.pos and cp < z:
                    cand.append((z, i))
                    break
        if len(cand) < need:
            return None
        cand.sort()
        return [i for _, i in cand[:need]]

    def dma_params(self, u, half):
        k, i = u
        nt = (" " + args.kvfl.replace("_", " ")) if args.kvfl else ""
        if k == "wq":
            return SRD_WQ, vWD, (sRQ + i // 2, (i % 2) * 262144), ""
        if k == "k":
            return SRD_K, vKD, (i // 4) * 16384 + (i % 4) * 128, nt
        if k == "v":
            return SRD_V, vVD, i * 16384, nt
        return SRD_WO, vOD, (sRO + i, half * 14336), ""

    def step_dma(self, force=False, split=False):
        if self.qd >= len(self.order):
            return 0
        if self.dsub == 0 and not self.setup_done:
            skipped = set()
            found = None
            for ci in range(self.qd, min(self.qd + 4, len(self.order))):
                u = self.order[ci]
                if u[0] in skipped:
                    continue
                s = self.find_slots(u, force)
                if s is not None:
                    found = (ci, s)
                    break
                skipped.add(u[0])
            if found is None:
                return 0
            ci, s = found
            self.order.insert(self.qd, self.order.pop(ci))
            u = self.order[self.qd]
            for k in range(self.nblk(u) // 4):
                if self.slot_last[s + k]:
                    g.wait_ds(("A", self.slot_last[s + k][0]))
                self.slot_owner[s + k] = u
            self.slot[u] = s
        u = self.order[self.qd]
        half, j = self.dsub // 4, self.dsub % 4
        srd_, vo, so, fl = self.dma_params(u, half)
        n = 0
        if j == 0 and not self.setup_done:
            E(f"s_add_u32 m0, {S(sRING)}, {(self.slot[u] + half) * 4096}")
            if isinstance(so, tuple):
                E(f"s_add_u32 {S(sOFF)}, {S(so[0])}, {so[1]}")
            else:
                E(f"s_mov_b32 {S(sOFF)}, {so}")
            n = 2
            if split:
                self.setup_done = True
                return n
        self.setup_done = False
        off = f" offset:{j * 1024}" if j else ""
        E(f"buffer_load_dwordx4 {V(vo + j)}, {S(srd_, 4)}, {S(sOFF)} offen{off}{fl} lds", tag=("G", u))
        self.last_dma = now[0]
        self.dsub += 1
        if self.dsub == self.nblk(u):
            self.tdma[u] = now[0]
            kv = u[0] in ("k", "v")
            lat = args.latk if kv else args.latw
            pace = (args.pacek if kv else args.pacew) * self.nblk(u) // 4
            self.land[u] = max(now[0] + lat, self.last_land + pace)
            self.last_land = self.land[u]
            self.dsub = 0
            self.qd += 1
        return n + 1

    def reg(self, u, idx, n):
        ch = self.regs[u][idx // 16]
        k, b, _ = chunks[ch]
        return R(k, b + idx % 16, n)

    def read_list(self, u):
        k, i = u
        so = self.slot[u] * 4096
        out = []
        if k in ("wq", "v"):
            base = vTRw if k == "wq" else vTRv
            for ks in range(2):
                for mt in range(2):
                    for r2 in range(2):
                        off = so + ks * 2048 + r2 * (512 if k == "wq" else 1024)
                        out.append(f"ds_read_b64_tr_b16 {self.reg(u, (ks * 2 + mt) * 4 + r2 * 2, 2)}, {V(base + mt)} offset:{off}")
        elif k == "k":
            for q in range(4):
                out.append(f"ds_read_b128 {self.reg(u, q * 4, 4)}, {V(vRBk + q)} offset:{so}")
        else:
            for m in range(7):
                for r2 in range(2):
                    out.append(f"ds_read_b64_tr_b16 {self.reg(u, m * 4 + r2 * 2, 2)}, {V(vTRo + m)} offset:{so + r2 * 1024}")
        return out

    def step_read(self, force=False, nmax=None):
        if self.qr >= len(self.order):
            return False
        u = self.order[self.qr]
        if u not in self.tdma:
            return False
        if self.rlist is None:
            if not force:
                if now[0] < self.land[u]:
                    return False
                if args.noabsorb and cons_pos(u) > self.pos + 1.5:
                    return False
            ch = self.find_chunks(u)
            if ch is None:
                if force:
                    raise RuntimeError(f"no chunk for {u} at pos {self.pos}")
                return False
            for c in ch:
                self.chunk_busy[c] = u
            self.regs[u] = ch
            self.rlist = self.read_list(u)
            g.wait_vm(("G", u))
            if now[0] < self.land[u]:
                now[0] = self.land[u]; shadow[0] = 0
            if args.verbose:
                print(f"read {u} at t={now[0]:.0f} pos={self.pos} (dma t={self.tdma[u]:.0f}) {'FORCED' if force else ''}")
        n = args.rdtick if nmax is None else nmax
        for _ in range(n):
            if not self.rlist:
                break
            E(self.rlist.pop(0), tag=("A", u))
        if not self.rlist:
            self.rlist = None
            s = self.slot[u]
            for k in range(self.nblk(u) // 4):
                self.slot_owner[s + k] = None
                self.slot_last[s + k] = (u, now[0])
            self.done.add(u)
            self.qr += 1
        return True

    def tick(self, budget=4):
        used = 0
        if now[0] - self.last_dma >= args.dgap:
            used = self.step_dma(split=(budget < 3))
        if budget - used > 0:
            self.step_read(nmax=budget - used)

    def force(self, u):
        guard = 0
        while u not in self.done:
            guard += 1
            assert guard < 10000, "engine stuck"
            nxt = self.order[self.qr]
            if self.rlist is None and (nxt not in self.land or now[0] < self.land[nxt]):
                while self.step_dma(force=True):
                    pass
            if self.step_read(force=True, nmax=99):
                continue
            if not self.step_dma(force=True):
                raise RuntimeError("engine deadlock")

    def release(self, u):
        for c in self.regs[u]:
            self.chunk_busy[c] = None


def make_order():
    wq = [("wq", i) for i in range(14)]
    k = [("k", i) for i in range(16)]
    v = [("v", i) for i in range(16)]
    wo = [("wo", i) for i in range(8)]
    if args.kearly:
        o = wq[:args.kearly]
        rest = wq[args.kearly:]
        ki = 0
        for n, w in enumerate(rest):
            if n % args.kratio == 0:
                o.append(k[ki]); ki += 1
            o.append(w)
        o += k[ki:]
    else:
        o = wq + k
    if args.woearly < 16:
        o += v[:args.woearly]
        wi = 0
        for n, x in enumerate(v[args.woearly:]):
            if n % args.woratio == 0 and wi < 8:
                o.append(wo[wi]); wi += 1
            o.append(x)
        o += wo[wi:]
    else:
        o += v + wo
    return o


eng = Engine(make_order())


def C(text, tag=None):
    E(text, tag)
    eng.tick()


vcount = [0]
def CV(text):
    E(text)
    vcount[0] += 1
    if vcount[0] % 4 == 0:
        eng.tick(3)


def barrier():
    g.barrier()
    now[0] += 60


M32 = "v_mfma_f32_32x32x16_bf16"
M16 = "v_mfma_f32_16x16x32_bf16"


def bbuf(i):
    return BBUF + (i % 2) * 16


def mfma_step(mf, breads, extra=None):
    for k, m in enumerate(mf):
        E(m)
        used = 0
        if k >= 1 and breads:
            for _ in range(2):
                if breads:
                    E(breads.pop(0)); used += 1
        if extra:
            for _ in range(args.xper):
                if extra:
                    E(extra.pop(0)); used += 1
        eng.tick(max(args.b32 - used, 1))
    for b in breads:
        E(b)


def fused_tail():
    r = g.raw
    sGRP, sOLD, sIT, sEXTRA, sCUR, sSKIP = 80, 81, 82, 83, 84, 85
    SRD_G, SRD_O = 8, 12
    g.wait_vm(); g.wait_ds()
    r("s_barrier")
    stamp()
    E(f"s_lshl_b32 {S(sGRP)}, {S(sBR)}, 3")
    E(f"s_add_u32 {S(sGRP)}, {S(sGRP)}, {S(sB)}")
    r(f"s_cmp_lg_u32 {S(sW)}, 0")
    r("s_cbranch_scc1 L_WAIT")
    E(f"s_lshl_b32 {S(sT0)}, {S(sGRP)}, 4")
    E(f"v_mov_b32 {V(vT)}, {S(sT0)}")
    E(f"v_mov_b32 {V(vT + 1)}, 1")
    E(f"s_mov_b32 {S(sEXTRA)}, 0")
    E(f"s_mov_b32 {S(sSKIP)}, 0")
    r("s_mov_b64 exec, 1")
    r(f"global_atomic_add {V(vT + 2)}, {V(vT)}, {V(vT + 1)}, {S(sPTR + 22, 2)} sc0")
    r("s_waitcnt vmcnt(0)")
    r(f"v_readfirstlane_b32 {S(sOLD)}, {V(vT + 2)}")
    r("s_nop 3")
    r(f"s_and_b32 {S(sT0)}, {S(sOLD)}, 0xff")
    r(f"s_cmp_eq_u32 {S(sT0)}, 15")
    r("s_cbranch_scc0 L_POLL0")
    r(f"s_bfe_u32 {S(sEXTRA)}, {S(sOLD)}, 0x100008")
    r("s_branch L_GO")
    r("L_POLL0:")
    r(f"s_mov_b32 {S(sIT)}, 0")
    r("L_POLL:")
    r(f"s_sleep {args.sleep}")
    r(f"global_load_dword {V(vT + 2)}, {V(vT)}, {S(sPTR + 22, 2)} sc1")
    r("s_waitcnt vmcnt(0)")
    r(f"v_readfirstlane_b32 {S(sOLD)}, {V(vT + 2)}")
    r("s_nop 3")
    r(f"s_and_b32 {S(sT0)}, {S(sOLD)}, 0xff")
    r(f"s_cmp_eq_u32 {S(sT0)}, 16")
    r("s_cbranch_scc1 L_GO")
    r(f"s_add_u32 {S(sIT)}, {S(sIT)}, 1")
    r(f"s_cmp_lt_u32 {S(sIT)}, {args.maxpoll}")
    r("s_cbranch_scc1 L_POLL")
    r(f"s_add_u32 {S(sT0)}, {S(sH)}, 8")
    r(f"s_lshl_b32 {S(sT0)}, 1, {S(sT0)}")
    r(f"v_mov_b32 {V(vT + 1)}, {S(sT0)}")
    r(f"global_atomic_add {V(vT + 2)}, {V(vT)}, {V(vT + 1)}, {S(sPTR + 22, 2)} sc0")
    r("s_waitcnt vmcnt(0)")
    r(f"v_readfirstlane_b32 {S(sOLD)}, {V(vT + 2)}")
    r("s_nop 3")
    r(f"s_and_b32 {S(sT0)}, {S(sOLD)}, 0xff")
    r(f"s_cmp_eq_u32 {S(sT0)}, 16")
    r("s_cbranch_scc1 L_GO")
    r(f"s_mov_b32 {S(sSKIP)}, 1")
    r("L_GO:")
    r(f"s_lshl_b32 {S(sT0)}, {S(sSKIP)}, 16")
    r(f"s_or_b32 {S(sT0)}, {S(sT0)}, {S(sEXTRA)}")
    r(f"v_mov_b32 {V(vT + 1)}, {S(sT0)}")
    r(f"v_mov_b32 {V(vT)}, 0")
    r(f"ds_write_b32 {V(vT)}, {V(vT + 1)} offset:{STATS}")
    r("s_waitcnt lgkmcnt(0)")
    r("s_mov_b64 exec, -1")
    r("L_WAIT:")
    E(f"s_mul_i32 {S(sT0)}, {S(sGRP)}, {16 * PART_BYTES}")
    srd(SRD_G, sPTR + 24, sT0, 16 * PART_BYTES)
    E(f"s_mov_b32 {S(SRD_O)}, {S(sPTR + 20)}")
    E(f"s_and_b32 {S(SRD_O + 1)}, {S(sPTR + 21)}, 0xffff")
    E(f"s_mov_b32 {S(SRD_O + 2)}, {8 * 64 * 896 * 2}")
    E(f"s_mov_b32 {S(SRD_O + 3)}, 0x00020000")
    E(f"v_lshrrev_b32 {V(vT + 4)}, 5, {V(vL)}")
    E(f"s_lshl_b32 {S(sT0)}, {S(sW)}, 1")
    E(f"v_add_u32 {V(vT + 4)}, {S(sT0)}, {V(vT + 4)}")
    E(f"v_min_u32 {V(vT + 4)}, 6, {V(vT + 4)}")
    E(f"v_and_b32 {V(vT + 5)}, 31, {V(vL)}")
    E(f"s_mul_i32 {S(sT2)}, {S(sB)}, 114688")
    E(f"s_mul_i32 {S(sT3)}, {S(sBR)}, 896")
    E(f"s_add_u32 {S(sT2)}, {S(sT2)}, {S(sT3)}")
    E(f"s_mov_b32 {S(sT3)}, 28672")
    r("s_barrier")
    E(f"v_mov_b32 {V(vT)}, 0")
    r(f"ds_read_b32 {V(vT + 1)}, {V(vT)} offset:{STATS}")
    r("s_waitcnt lgkmcnt(0)")
    r(f"v_readfirstlane_b32 {S(sEXTRA)}, {V(vT + 1)}")
    r("s_nop 3")
    r(f"s_lshr_b32 {S(sSKIP)}, {S(sEXTRA)}, 16")
    r(f"s_and_b32 {S(sEXTRA)}, {S(sEXTRA)}, 0xffff")
    r(f"s_cmp_lg_u32 {S(sSKIP)}, 0")
    r("s_cbranch_scc1 L_DONE")
    r(f"s_mov_b32 {S(sCUR)}, {S(sH)}")
    stamp()
    r("L_SLICE:")
    h = Gen()
    e = h.emit
    hb, off, blk, l64, wq_, j_, ob = vT + 6, vT + 7, vT + 8, vT + 9, vT + 10, vT + 11, vT + 12
    e(f"s_mul_i32 {S(sT0)}, {S(sCUR)}, 7")
    e(f"v_add_u32 {V(hb)}, {S(sT0)}, {V(vT + 4)}")
    e(f"v_lshlrev_b32 {V(off)}, 9, {V(hb)}")
    e(f"v_lshl_add_u32 {V(off)}, {V(vT + 5)}, 4, {V(off)}")
    D = 64
    for hh in range(16):
        e(f"s_mov_b32 {S(sT1)}, {hh * PART_BYTES}")
        e(f"buffer_load_dwordx4 {V(D + hh * 4, 4)}, {V(off)}, {S(SRD_G, 4)}, {S(sT1)} offen sc1")
    e(f"v_lshrrev_b32 {V(blk)}, 1, {V(hb)}")
    e(f"v_and_b32 {V(l64)}, 1, {V(hb)}")
    e(f"v_lshl_add_u32 {V(l64)}, {V(l64)}, 5, {V(vT + 5)}")
    e(f"v_mul_u32_u24 {V(wq_)}, 4682, {V(blk)}")
    e(f"v_lshrrev_b32 {V(wq_)}, 16, {V(wq_)}")
    e(f"v_mul_u32_u24 {V(j_)}, 14, {V(wq_)}")
    e(f"v_sub_u32 {V(j_)}, {V(blk)}, {V(j_)}")
    e(f"v_mul_u32_u24 {V(ob)}, 224, {V(wq_)}")
    e(f"v_lshrrev_b32 {V(blk)}, 1, {V(j_)}")
    e(f"v_lshl_add_u32 {V(ob)}, {V(blk)}, 5, {V(ob)}")
    e(f"v_and_b32 {V(j_)}, 1, {V(j_)}")
    e(f"v_mul_u32_u24 {V(j_)}, 57344, {V(j_)}")
    e(f"v_add3_u32 {V(ob)}, {V(ob)}, {V(j_)}, {S(sT2)}")
    e(f"v_and_b32 {V(j_)}, 15, {V(l64)}")
    e(f"v_mul_u32_u24 {V(j_)}, 1792, {V(j_)}")
    e(f"v_lshrrev_b32 {V(l64)}, 4, {V(l64)}")
    e(f"v_lshl_add_u32 {V(j_)}, {V(l64)}, 3, {V(j_)}")
    e(f"v_add_u32 {V(ob)}, {V(ob)}, {V(j_)}")
    AC, TM = 128, 136
    for hh in range(16):
        for k in range(4):
            src = D + hh * 4 + k
            if hh == 0:
                e(f"v_lshlrev_b32 {V(AC + 2 * k)}, 16, {V(src)}")
                e(f"v_and_b32 {V(AC + 1 + 2 * k)}, 0xffff0000, {V(src)}")
            else:
                e(f"v_lshlrev_b32 {V(TM + (k % 2) * 2)}, 16, {V(src)}")
                e(f"v_and_b32 {V(TM + 1 + (k % 2) * 2)}, 0xffff0000, {V(src)}")
                e(f"v_pk_add_f32 {V(AC + 2 * k, 2)}, {V(AC + 2 * k, 2)}, {V(TM + (k % 2) * 2, 2)}")
    for k in range(4):
        e(f"v_cvt_pk_bf16_f32 {V(TM + k)}, {V(AC + 2 * k)}, {V(AC + 1 + 2 * k)}")
    e(f"buffer_store_dwordx2 {V(TM, 2)}, {V(ob)}, {S(SRD_O, 4)}, 0 offen")
    e(f"buffer_store_dwordx2 {V(TM + 2, 2)}, {V(ob)}, {S(SRD_O, 4)}, {S(sT3)} offen")
    for i in h.ins:
        g.ins.append(i)
    r(f"s_cmp_eq_u32 {S(sEXTRA)}, 0")
    r("s_cbranch_scc1 L_DONE")
    r(f"s_ff1_i32_b32 {S(sCUR)}, {S(sEXTRA)}")
    r(f"s_bitset0_b32 {S(sEXTRA)}, {S(sCUR)}")
    r("s_waitcnt vmcnt(0)")
    r("s_branch L_SLICE")
    r("L_DONE:")
    g.vm = [(set(), "tail")]


def k1():
    prologue_a()
    stamp()
    dma_x()
    for _ in range(4 * args.init):
        eng.step_dma(force=True)
    prologue_b()
    g.wait_vm("X")
    g.raw("s_barrier")
    now[0] = max(now[0], 3000)
    stamp()
    def xb_reads(G):
        out = []
        bb = bbuf(G)
        for ks2 in range(2):
            ks = 2 * G + ks2
            for nt in range(2):
                off = X_BASE + ((ks >> 2) * 8 + 4 * nt) * 1024
                out.append(f"ds_read_b128 {A(bb + (ks2 * 2 + nt) * 4, 4)}, {V(vRBx + (ks & 3))} offset:{off}")
        return out
    for x in xb_reads(0):
        E(x)
    for G in range(14):
        u = ("wq", G)
        eng.pos = G
        eng.force(u)
        bb = bbuf(G)
        mf = []
        for ks in range(2):
            for mt in range(2):
                for nt in range(2):
                    acc = V(ACC + (mt * 2 + nt) * 16, 16)
                    c = "0" if (G == 0 and ks == 0) else acc
                    mf.append(f"{M32} {acc}, {eng.reg(u, (ks * 2 + mt) * 4, 4)}, {A(bb + (ks * 2 + nt) * 4, 4)}, {c}")
        eng.pos = G + 0.4
        if G + 1 < 14:
            pass
        mfma_step(mf, xb_reads(G + 1) if G + 1 < 14 else [])
        eng.release(u)
    eng.pos = 13.5
    stamp()
    barrier()
    for mt in range(2):
        for nt in range(2):
            acc = ACC + (mt * 2 + nt) * 16
            for tt in range(2):
                tmp = vT + ((mt * 4 + nt * 2 + tt) % 4) * 4
                for k in range(4):
                    E(f"v_cvt_pk_bf16_f32 {V(tmp + k)}, {V(acc + 8 * tt + 2 * k)}, {V(acc + 8 * tt + 2 * k + 1)}")
                C(f"ds_write_b128 {V(vQW)}, {V(tmp, 4)} offset:{X_BASE + (2 * mt + tt) * 2048 + nt * 1024}")
    barrier()
    stamp()
    def q_reads(cg):
        out = []
        for i in range(4):
            ks = cg * 4 + i
            for nt in range(2):
                out.append(f"ds_read_b128 {A(QREG + (ks * 2 + nt) * 4, 4)}, {V(vLin)} offset:{X_BASE + (ks * 2 + nt) * 1024}")
        return out
    def Sreg(T, nt, r):
        return ACC + (T * 2 + nt) * 16 + r
    vTM = [vT + k for k in range(8)]
    vTS = [vT + 8 + k for k in range(8)]
    def tile_exp(T):
        out = []
        for nt in range(2):
            vs = [Sreg(T, nt, r) for r in range(16)]
            m, sm_ = vTM[T * 2 + nt], vTS[T * 2 + nt]
            out.append(f"v_max3_f32 {V(m)}, {V(vs[0])}, {V(vs[1])}, {V(vs[2])}")
            out.append(f"v_max3_f32 {V(sm_)}, {V(vs[3])}, {V(vs[4])}, {V(vs[5])}")
            for k in range(6, 14, 4):
                out.append(f"v_max3_f32 {V(m)}, {V(m)}, {V(vs[k])}, {V(vs[k + 1])}")
                out.append(f"v_max3_f32 {V(sm_)}, {V(sm_)}, {V(vs[k + 2])}, {V(vs[k + 3])}")
            out.append(f"v_max3_f32 {V(m)}, {V(m)}, {V(vs[14])}, {V(vs[15])}")
            out.append(f"v_max_f32 {V(m)}, {V(m)}, {V(sm_)}")
            out.append(f"v_mul_f32 {V(m)}, {S(sC)}, {V(m)}")
        for nt in range(2):
            vs = [Sreg(T, nt, r) for r in range(16)]
            m, sm_ = vTM[T * 2 + nt], vTS[T * 2 + nt]
            for h in range(2):
                rs = vs[8 * h:8 * h + 8]
                for r in rs:
                    out.append(f"v_fma_f32 {V(r)}, {V(r)}, {S(sC)}, -{V(m)}")
                for r in rs:
                    out.append(f"v_exp_f32 {V(r)}, {V(r)}")
            out.append(f"v_add_f32 {V(sm_)}, {V(vs[0])}, {V(vs[1])}")
            for k in range(2, 16):
                out.append(f"v_add_f32 {V(sm_)}, {V(sm_)}, {V(vs[k])}")
        return out
    for x in q_reads(0):
        E(x)
    pending = []
    for i in range(16):
        u = ("k", i)
        eng.pos = 14 + i
        eng.force(u)
        T, cg = i // 4, i % 4
        mf = []
        for k4 in range(4):
            ks = cg * 4 + k4
            for nt in range(2):
                acc = V(ACC + (T * 2 + nt) * 16, 16)
                c = "0" if ks == 0 else acc
                mf.append(f"{M32} {acc}, {eng.reg(u, k4 * 4, 4)}, {A(QREG + (ks * 2 + nt) * 4, 4)}, {c}")
        eng.pos = 14 + i + 0.4
        if cg == 0 and T > 0:
            assert not pending
            E(mf.pop(0)); eng.tick(args.b32); E(mf.pop(0)); eng.tick(args.b32)
            pending = tile_exp(T - 1)
        mfma_step(mf, q_reads(cg + 1) if (T == 0 and cg < 3) else [], pending)
        if cg == 3:
            for x in pending:
                CV(x)
            pending = []
        eng.release(u)
    eng.pos = 29.6
    stamp()
    if args.wowarm:
        E(f"v_lshlrev_b32 {V(vT + 15)}, 7, v0")
        E(f"buffer_load_dword {A(255)}, {V(vT + 15)}, {S(SRD_WO, 4)}, {S(sRO)} offen", tag="warm")
    lst = tile_exp(3)
    nmax = 2 * 9
    for x in lst[:nmax]:
        CV(x)
    mA, mB = vRBx, vRBx + 1
    for nt, d in ((0, mA), (1, mB)):
        E(f"v_max3_f32 {V(d)}, {V(vTM[nt])}, {V(vTM[2 + nt])}, {V(vTM[4 + nt])}")
        E(f"v_max_f32 {V(d)}, {V(d)}, {V(vTM[6 + nt])}")
    E(f"v_permlane32_swap_b32 {V(mA)}, {V(mB)}")
    E(f"v_max_f32 {V(mA)}, {V(mA)}, {V(mB)}")
    E(f"ds_write_b32 {V(vSTw)}, {V(mA)} offset:{STATS}")
    half = nmax + (len(lst) - nmax) // 2
    for x in lst[nmax:half]:
        CV(x)
    barrier()
    st0, st1 = vXD, vWD
    E(f"ds_read_b128 {V(vWD, 4)}, {V(vSTr)} offset:{STATS}")
    E(f"ds_read_b128 {V(vKD, 4)}, {V(vSTr)} offset:{STATS + 512}")
    for x in lst[half:]:
        CV(x)
    for b, d in ((vWD, mA), (vKD, mB)):
        E(f"v_max3_f32 {V(d)}, {V(b)}, {V(b + 1)}, {V(b + 2)}")
        E(f"v_max_f32 {V(d)}, {V(d)}, {V(b + 3)}")
    barrier()
    for T in range(4):
        for nt, d in ((0, mA), (1, mB)):
            E(f"v_sub_f32 {V(vTM[T * 2 + nt])}, {V(vTM[T * 2 + nt])}, {V(d)}")
    for k in range(8):
        E(f"v_exp_f32 {V(vTM[k])}, {V(vTM[k])}")
    sm = [vRBx + 2, vRBx + 3]
    for nt in range(2):
        E(f"v_mul_f32 {V(sm[nt])}, {V(vTS[nt])}, {V(vTM[nt])}")
        for T in range(1, 4):
            E(f"v_fmac_f32 {V(sm[nt])}, {V(vTS[T * 2 + nt])}, {V(vTM[T * 2 + nt])}")
    E(f"v_permlane32_swap_b32 {V(sm[0])}, {V(sm[1])}")
    E(f"v_add_f32 {V(sm[0])}, {V(sm[0])}, {V(sm[1])}")
    for T in range(4):
        for nt in range(2):
            f = vTM[T * 2 + nt]
            fp = f & ~1
            sel = f & 1
            for tt in range(2):
                rs = [Sreg(T, nt, 8 * tt + e) for e in range(8)]
                for k in range(4):
                    CV(f"v_pk_mul_f32 {V(rs[2 * k], 2)}, {V(rs[2 * k], 2)}, {V(fp, 2)} op_sel:[0,{sel}] op_sel_hi:[1,{sel}]")
                for k in range(4):
                    CV(f"v_cvt_pk_bf16_f32 {V(rs[k])}, {V(rs[2 * k])}, {V(rs[2 * k + 1])}")
                E(f"ds_write_b128 {V(vPW)}, {V(rs[0], 4)} offset:{X_BASE + (2 * T + tt) * 2048 + nt * 1024}")
    eng.pos = 29.9
    barrier()
    stamp()
    def p_reads(i):
        out = []
        bb = bbuf(i)
        for ks2 in range(2):
            for nt in range(2):
                off = X_BASE + ((2 * i + ks2) * 2 + nt) * 1024
                out.append(f"ds_read_b128 {A(bb + (ks2 * 2 + nt) * 4, 4)}, {V(vLin)} offset:{off}")
        return out
    for x in p_reads(0):
        E(x)
    for i in range(16):
        u = ("v", i)
        eng.pos = 30 + i
        eng.force(u)
        bb = bbuf(i)
        mf = []
        for ks in range(2):
            for mt in range(2):
                for nt in range(2):
                    acc = V(ACC + (mt * 2 + nt) * 16, 16)
                    c = "0" if (i == 0 and ks == 0) else acc
                    mf.append(f"{M32} {acc}, {eng.reg(u, (ks * 2 + mt) * 4, 4)}, {A(bb + (ks * 2 + nt) * 4, 4)}, {c}")
        eng.pos = 30 + i + 0.4
        mfma_step(mf, p_reads(i + 1) if i + 1 < 16 else [])
        eng.release(u)
    eng.pos = 45.6
    stamp()
    barrier()
    E(f"ds_write_b32 {V(vSTw)}, {V(sm[0])} offset:{SUMS}")
    for mt in range(2):
        for nt in range(2):
            acc = ACC + (mt * 2 + nt) * 16
            for tt in range(2):
                tmp = vT + ((mt * 4 + nt * 2 + tt) % 3) * 4 + 4
                for k in range(4):
                    E(f"v_cvt_pk_bf16_f32 {V(tmp + k)}, {V(acc + 8 * tt + 2 * k)}, {V(acc + 8 * tt + 2 * k + 1)}")
                C(f"ds_write_b128 {V(vOW if mt == 0 else vOW2)}, {V(tmp, 4)} offset:{X_BASE + nt * 2048 + tt * 512}")
    barrier()
    stamp()
    def o_reads(s):
        return [f"ds_read_b128 {A(bbuf(s) + u * 4, 4)}, {V(vLin)} offset:{X_BASE + (s * 4 + u) * 1024}" for u in range(4)]
    for x in o_reads(0):
        E(x)
    for u4 in range(4):
        E(f"ds_read_b128 {V(vT + u4 * 4, 4)}, {V(vSMr)} offset:{SUMS + u4 * 256}")
    fl = (" " + args.stsc) if args.stsc else ""
    def store_tile(m, up):
        out = []
        a0 = ACC + (m * 4 + 2 * up) * 4
        for h in range(2):
            rinv = V(vT + (2 * up + h) * 4)
            for k in range(4):
                out.append(f"v_mul_f32 {V(a0 + 4 * h + k)}, {V(a0 + 4 * h + k)}, {rinv}")
        for k in range(4):
            out.append(f"v_cvt_pk_bf16_f32 {V(a0 + k)}, {V(a0 + 2 * k)}, {V(a0 + 2 * k + 1)}")
        j = m * 2 + up
        out.append(f"buffer_store_dwordx4 {V(a0, 4)}, {V(vOut)}, {S(SRD_P, 4)}, {S(sST + j // 4)} offen offset:{(j % 4) * 1024}{fl}")
        return out
    for s in range(8):
        u = ("wo", s)
        eng.pos = 46 + s
        eng.force(u)
        bb = bbuf(s)
        mf = []
        for m in range(7):
            for u4 in range(4):
                acc = V(ACC + (m * 4 + u4) * 4, 4)
                c = "0" if s == 0 else acc
                mf.append(f"{M16} {acc}, {eng.reg(u, m * 4, 4)}, {A(bb + u4 * 4, 4)}, {c}")
        eng.pos = 46 + s + 0.4
        if s < 7:
            extra = o_reads(s + 1)
            if s == 0:
                for u4 in range(4):
                    b = vT + u4 * 4
                    extra += [f"v_add_f32 {V(b)}, {V(b)}, {V(b + 1)}", f"v_add_f32 {V(b + 2)}, {V(b + 2)}, {V(b + 3)}",
                              f"v_add_f32 {V(b)}, {V(b)}, {V(b + 2)}", f"v_rcp_f32 {V(b)}, {V(b)}"]
            for k, m in enumerate(mf):
                E(m)
                if k >= 2 and extra and k % 2 == 0:
                    E(extra.pop(0))
                    eng.tick(args.b16 - 1)
                else:
                    eng.tick(args.b16)
            for x in extra:
                E(x)
        else:
            pend = []
            for k, mm in enumerate(mf):
                E(mm)
                m, u4 = k // 4, k % 4
                if u4 == 0 and m >= 2:
                    pend += store_tile(m - 2, 0) + store_tile(m - 2, 1)
                for _ in range(7):
                    if pend:
                        E(pend.pop(0))
            for x in pend:
                E(x)
            stamp()
            for m in (5, 6):
                for up in range(2):
                    for x in store_tile(m, up):
                        E(x)
        eng.release(u)
    if args.fused:
        if args.stamps:
            g.wait_vm()
            stamp()
        fused_tail()
    if args.stamps:
        g.wait_vm()
        stamp()
        n = stamp_n[0]
        E(f"v_mov_b32 {V(vT)}, 0")
        E(f"v_accvgpr_read_b32 {V(vT + 3)}, {A(STAMP_A)}")
        for k in range(n):
            E(f"v_accvgpr_read_b32 {V(vT + 1)}, {A(STAMP_A + k)}")
            E(f"v_sub_u32 {V(vT + 1)}, {V(vT + 1)}, {V(vT + 3)}")
            E(f"v_cmp_eq_u32 vcc, {k}, {V(vL)}")
            E(f"v_cndmask_b32 {V(vT)}, {V(vT)}, {V(vT + 1)}, vcc")
        E(f"v_lshlrev_b32 {V(vT + 2)}, 2, v0")
        E(f"buffer_store_dword {V(vT)}, {V(vT + 2)}, {S(SRD_D, 4)}, 0 offen")
    if args.dbgtime:
        g.wait_vm()
        g.raw("s_memtime s[88:89]")
        g.raw("s_memrealtime s[90:91]")
        g.raw("s_waitcnt lgkmcnt(0)")
        E("s_mul_hi_u32 s80, s2, 50529028")
        E("s_mul_i32 s81, s80, 85")
        E("s_cmp_eq_u32 s81, s2")
        g.raw("s_cbranch_scc0 K1_END")
        E("s_sub_u32 s88, s88, s96")
        E(f"v_mov_b32 {V(vT)}, s88")
        E(f"v_mov_b32 {V(vT + 1)}, s98")
        E(f"v_mov_b32 {V(vT + 2)}, s90")
        E(f"v_mov_b32 {V(vT + 3)}, s2")
        E("s_lshl_b32 s80, s80, 4")
        E(f"s_add_u32 s80, s80, {100 << 20}")
        E(f"v_mov_b32 {V(vT + 4)}, s80")
        E("v_cmp_eq_u32 vcc, 0, v0")
        g.raw("s_nop 4")
        g.raw("s_and_saveexec_b64 s[82:83], vcc")
        g.raw("s_cbranch_execz K1_END")
        E(f"global_store_dwordx4 {V(vT + 4)}, {V(vT, 4)}, {S(sPTR + 24, 2)}")
    g.raw("K1_END:")
    g.raw("s_endpgm")


def k2():
    h = Gen()
    e = h.emit
    h.raw("s_cmp_ge_u32 s2, 896")
    h.raw("s_cbranch_scc1 K2_END")
    h.raw("s_load_dwordx2 s[4:5], s[0:1], 80")
    h.raw("s_load_dwordx2 s[6:7], s[0:1], 96")
    if args.dbgtime:
        h.raw("s_load_dwordx2 s[40:41], s[0:1], 88")
        h.raw("s_memrealtime s[42:43]")
    e("s_mul_hi_u32 s3, s2, 0x4924925")
    e("s_mul_i32 s8, s3, 56")
    e("s_sub_u32 s8, s2, s8")
    e("v_lshlrev_b32 v2, 4, v0")
    e("s_lshl_b32 s9, s8, 10")
    e("v_add_u32 v2, s9, v2")
    e(f"s_mul_i32 s12, s3, {16 * PART_BYTES}")
    for hh in range(16):
        e(f"s_mov_b32 s{24 + hh}, {hh * PART_BYTES}")
    e(f"s_mov_b32 s18, {16 * PART_BYTES}")
    e("s_mov_b32 s19, 0x00020000")
    h.raw("s_waitcnt lgkmcnt(0)")
    e("s_add_u32 s16, s6, s12")
    e("s_addc_u32 s17, s7, 0")
    e("s_and_b32 s17, s17, 0xffff")
    for hh in range(16):
        e(f"buffer_load_dwordx4 {V(16 + hh * 4, 4)}, v2, s[16:19], s{24 + hh} offen")
    e("s_mul_i32 s9, s8, 4682")
    e("s_lshr_b32 s9, s9, 16")
    e("s_mul_i32 s13, s9, 14")
    e("s_sub_u32 s13, s8, s13")
    e("s_lshr_b32 s14, s13, 1")
    e("s_and_b32 s13, s13, 1")
    e("s_and_b32 s10, s3, 7")
    e("s_lshr_b32 s11, s3, 3")
    e("s_mul_i32 s10, s10, 114688")
    e("s_mul_i32 s11, s11, 896")
    e("s_add_u32 s10, s10, s11")
    e("s_mul_i32 s11, s13, 57344")
    e("s_add_u32 s10, s10, s11")
    e("s_mul_i32 s11, s9, 224")
    e("s_add_u32 s10, s10, s11")
    e("s_lshl_b32 s11, s14, 5")
    e("s_add_u32 s10, s10, s11")
    e("v_and_b32 v3, 15, v0")
    e("v_lshrrev_b32 v4, 4, v0")
    e("v_mul_u32_u24 v3, 1792, v3")
    e("v_lshl_add_u32 v3, v4, 3, v3")
    e("v_add_u32 v3, s10, v3")
    e("s_mov_b32 s15, 28672")
    e("s_mov_b32 s20, s4")
    e("s_and_b32 s21, s5, 0xffff")
    e(f"s_mov_b32 s22, {8 * 64 * 896 * 2}")
    e("s_mov_b32 s23, 0x00020000")
    for hh in range(16):
        for k in range(4):
            src = 16 + hh * 4 + k
            if hh == 0:
                e(f"v_lshlrev_b32 {V(8 + 2 * k)}, 16, {V(src)}")
                e(f"v_and_b32 {V(9 + 2 * k)}, 0xffff0000, {V(src)}")
            else:
                e(f"v_lshlrev_b32 {V(4 + (k % 2) * 2)}, 16, {V(src)}")
                e(f"v_and_b32 {V(5 + (k % 2) * 2)}, 0xffff0000, {V(src)}")
                e(f"v_pk_add_f32 {V(8 + 2 * k, 2)}, {V(8 + 2 * k, 2)}, {V(4 + (k % 2) * 2, 2)}")
    for k in range(4):
        e(f"v_cvt_pk_bf16_f32 {V(4 + k)}, {V(8 + 2 * k)}, {V(9 + 2 * k)}")
    nv = 80
    e("buffer_store_dwordx2 v[4:5], v3, s[20:23], 0 offen")
    e("buffer_store_dwordx2 v[6:7], v3, s[20:23], s15 offen")
    if args.dbgtime:
        h.wait_vm()
        h.raw("s_memrealtime s[44:45]")
        h.raw("s_waitcnt lgkmcnt(0)")
        e("s_cmp_eq_u32 s2, 895")
        h.raw("s_cbranch_scc0 K2_END")
        e("v_lshlrev_b32 v1, 2, v0")
        e(f"v_add_u32 v2, {100 << 20}, v1")
        e("v_cmp_gt_u32 vcc, 16, v0")
        h.raw("s_nop 4")
        h.raw("s_and_saveexec_b64 s[46:47], vcc")
        h.raw("s_cbranch_execz K2_END")
        e("global_load_dword v3, v2, s[6:7]")
        e("v_mov_b32 v4, s42")
        e("v_cmp_eq_u32 vcc, 3, v0")
        e("v_cndmask_b32 v3, v3, v4, vcc")
        e("v_mov_b32 v4, s44")
        e("v_cmp_eq_u32 vcc, 7, v0")
        e("v_cndmask_b32 v3, v3, v4, vcc")
        e("global_store_dword v1, v3, s[40:41]")
    h.raw("K2_END:")
    h.raw("s_endpgm")
    return h.finish(), nv


k1()
body1 = g.finish()
nins = sum(1 for l in body1.splitlines() if l.strip() and not l.strip().startswith(';') and not l.strip().endswith(':'))
body2, nv2 = k2()

desc = lambda name, nv, acc, ns: f""".p2align 6
.amdhsa_kernel {name}
  .amdhsa_next_free_vgpr {nv}
  .amdhsa_next_free_sgpr {ns}
  .amdhsa_accum_offset {acc}
  .amdhsa_group_segment_fixed_size 0
  .amdhsa_kernarg_size 104
  .amdhsa_user_sgpr_count 2
  .amdhsa_user_sgpr_kernarg_segment_ptr 1
  .amdhsa_system_sgpr_workgroup_id_x 1
.end_amdhsa_kernel
"""
K1 = NAME + "_kernel"
K2 = "reduce_partials_kernel"
txt = HEADER
if args.fused:
    txt += f"; @launch grid=(256,1,1) block=(256,1,1) lds={LDS_BYTES}\n"
else:
    txt += f"; @launch kernel={K1} grid=(256,1,1) block=(256,1,1) lds={LDS_BYTES}\n"
    if not args.nok2:
        txt += f"; @launch kernel={K2} grid=(896,1,1) block=(64,1,1) lds=0\n"
k2txt = "" if args.fused else f""".globl {K2}
.p2align 8
.type {K2},@function
{K2}:
{body2}"""
k2desc = "" if args.fused else desc(K2, nv2, (nv2 + 3) // 4 * 4, 48)
txt += f""".amdgcn_target "amdgcn-amd-amdhsa--gfx950"
.text
.globl {K1}
.p2align 8
.type {K1},@function
{K1}:
{body1}
{k2txt}
CODE_END:
.fill 64, 4, 0xbf800000
.section .rodata,"a"
{desc(K1, 512, 256, 102)}
{k2desc}
"""
open(args.o, "w").write(txt)
print(f"wrote {args.o}: k1 {nins} instrs, est {now[0]:.0f} cycles")
```

```python
import sys, math, argparse, struct
from asmgen import Gen, V, A, S, R

NAME = "concat_heads__gqa_block_cached__gqa_block_cached__near_ridge"
HEADER = open("cdna_kernels/" + NAME + ".s.ref").read().split("; Override launch")[0]

ap = argparse.ArgumentParser()
ap.add_argument("-o", default="k.s")
ap.add_argument("--stamps", action="store_true")
ap.add_argument("--dbgtime", action="store_true")
ap.add_argument("--nok2", action="store_true")
ap.add_argument("--kvfl", default="nt")
ap.add_argument("--vfl", default=None)
ap.add_argument("--stsc", default="sc1")
ap.add_argument("--nopf", action="store_true")
ap.add_argument("--rot", type=int, default=1)
ap.add_argument("--latw", type=int, default=1500)
ap.add_argument("--latk", type=int, default=2000)
ap.add_argument("--dgap", type=int, default=20)
ap.add_argument("--pacew", type=int, default=200)
ap.add_argument("--pacek", type=int, default=580)
ap.add_argument("--xrot", type=int, default=1)
ap.add_argument("--wowarm", type=int, default=0)
ap.add_argument("--smov", type=int, default=1)
ap.add_argument("--urg32", type=int, default=5)
ap.add_argument("--urg16", type=int, default=14)
ap.add_argument("--rdtick", type=int, default=4)
ap.add_argument("--b32", type=int, default=4)
ap.add_argument("--b16", type=int, default=2)
ap.add_argument("--xper", type=int, default=3)
ap.add_argument("--init", type=int, default=3, help="units DMA'd before waiting for x")
ap.add_argument("--kearly", type=int, default=3, help="interleave K units into the wq stream starting after this many wq units (0=off)")
ap.add_argument("--kratio", type=int, default=3)
ap.add_argument("--woearly", type=int, default=16)
ap.add_argument("--woratio", type=int, default=1)
ap.add_argument("--noabsorb", action="store_true")
ap.add_argument("--verbose", action="store_true")
ap.add_argument("--fused", type=int, default=0)
ap.add_argument("--maxpoll", type=int, default=400)
ap.add_argument("--sleep", type=int, default=2)
ap.add_argument("--nomfma", action="store_true")
ap.add_argument("--novalu", action="store_true")
ap.add_argument("--skip", default="", help="timing experiments: comma list of streams whose DMAs are dropped")
args = ap.parse_args()

PART_BYTES = 64 * 448 * 2

X_BASE = 0
STATS = 57344
SUMS = 32768
RING0 = 65536
NSLOT = 6
RING_W = NSLOT * 4096
LDS_BYTES = RING0 + 4 * RING_W
assert LDS_BYTES <= 163840

sW, sRING, sOFF, sC = 4, 5, 6, 7
SRD_X, SRD_WQ, SRD_K, SRD_V, SRD_WO, SRD_P = 8, 12, 16, 20, 24, 28
sB, sH, sBR, sKV = 32, 33, 34, 35
sPTR = 36
sPC = 62
sT0, sT1, sT2, sT3 = 64, 65, 66, 67
sST = 68
SRD_D = 72
sTM = 76
sROT8 = 78
sRQ = 80
sRO = 88

vL = 1
vXD = 2
vWD = 4
vKD = 8
vVD = 12
vOD = 16
vRBx = 20
vRBk = 24
vTRw = 28
vTRv = 30
vTRo = 32
vLin = 39
vQW = 40
vPW = 41
vOW = 42
vSTw = 43
vSTr = 44
vOW2 = 45
vSMr = 46
vOut = 47
vT = 48
ACC = 128
BBUF = 128
QREG = 0
STAMP_A = 240

g = Gen()
now = [0.0]
shadow = [0.0]


def cost_of(text):
    op = text.split()[0]
    if op.startswith("v_mfma"):
        return None
    if op in ("v_exp_f32", "v_rcp_f32"):
        return 8
    if op.startswith("v_") or op.startswith("s_"):
        return 4
    if op.startswith("ds_write"):
        return 16
    if op.startswith("ds_"):
        return 6
    return 12


def E(text, tag=None):
    drop = (args.nomfma and text.startswith("v_mfma")) or (args.novalu and text.split()[0] in ("v_exp_f32", "v_fma_f32", "v_max3_f32", "v_pk_add_f32"))
    if tag and isinstance(tag, tuple) and tag[0] == "G" and tag[1][0] in args.skip.split(","):
        drop = True
    if not drop:
        g.emit(text, tag)
    c = cost_of(text)
    if c is None:
        m = 32 if "32x32" in text else 16
        now[0] += max(shadow[0], 0) + 8
        shadow[0] = m - 8
    else:
        use = min(c, max(shadow[0], 0))
        shadow[0] -= use
        now[0] += c


def f32bits(x):
    return struct.unpack("<I", struct.pack("<f", x))[0]


stamp_n = [0]
def stamp():
    if not args.stamps:
        return
    k = stamp_n[0]; stamp_n[0] += 1
    assert k < 13
    g.raw(f"s_memtime {S(sTM, 2)}")
    g.raw("s_waitcnt lgkmcnt(0)")
    g.lg = []
    E(f"v_accvgpr_write_b32 {A(STAMP_A + k)}, {S(sTM)}")


def srd(base, ptr, off_sreg, nrec):
    E(f"s_add_u32 {S(base)}, {S(ptr)}, {S(off_sreg)}")
    E(f"s_addc_u32 {S(base + 1)}, {S(ptr + 1)}, 0")
    E(f"s_and_b32 {S(base + 1)}, {S(base + 1)}, 0xffff")
    if isinstance(nrec, int):
        E(f"s_mov_b32 {S(base + 2)}, {nrec}")
    else:
        E(f"s_sub_u32 {S(base + 2)}, {nrec[0]}, {S(nrec[1])}")
    E(f"s_mov_b32 {S(base + 3)}, 0x00020000")


t = [vT + 4 + i for i in range(10)]
l3, l7, l4 = t[0], t[1], t[2]


def prologue_a():
    g.raw("s_cmp_ge_u32 s2, 256")
    g.raw("s_cbranch_scc1 K1_END")
    if args.dbgtime:
        g.raw("s_memtime s[96:97]")
        g.raw("s_memrealtime s[98:99]")
    stamp()
    g.raw(f"s_load_dwordx16 {S(sPTR, 16)}, s[0:1], 0")
    g.raw(f"s_load_dwordx8 {S(sPTR + 16, 8)}, s[0:1], 64")
    g.raw(f"s_load_dwordx2 {S(sPTR + 24, 2)}, s[0:1], 96")
    if not args.nopf:
        E(f"s_getpc_b64 {S(sPC, 2)}")
        g.raw("K1_PC:")
        E(f"v_lshlrev_b32 {V(vT)}, 7, v0")
        E(f"v_min_u32 {V(vT + 2)}, CODE_END-K1_PC-4, {V(vT)}")
        E(f"global_load_dword {A(254)}, {V(vT + 2)}, {S(sPC, 2)}", tag="pf")
        E(f"v_add_u32 {V(vT)}, 0x8000, {V(vT)}")
        E(f"v_min_u32 {V(vT + 2)}, CODE_END-K1_PC-4, {V(vT)}")
        E(f"global_load_dword {A(253)}, {V(vT + 2)}, {S(sPC, 2)}", tag="pf")
    E(f"v_and_b32 {V(vL)}, 63, v0")
    E(f"v_lshrrev_b32 {V(vT + 3)}, 6, v0")
    E(f"v_readfirstlane_b32 {S(sW)}, {V(vT + 3)}")
    E(f"s_and_b32 {S(sT0)}, s2, 7")
    E(f"s_lshr_b32 {S(sT1)}, s2, 3")
    E(f"s_lshr_b32 {S(sT2)}, {S(sT1)}, 4")
    E(f"s_lshl_b32 {S(sT0)}, {S(sT0)}, 1")
    E(f"s_add_u32 {S(sT0)}, {S(sT0)}, {S(sT2)}")
    E(f"s_lshr_b32 {S(sBR)}, {S(sT0)}, 3")
    E(f"s_and_b32 {S(sKV)}, {S(sT0)}, 7")
    E(f"s_lshr_b32 {S(sB)}, {S(sT1)}, 1")
    E(f"s_and_b32 {S(sB)}, {S(sB)}, 7")
    E(f"s_and_b32 {S(sT2)}, {S(sT1)}, 1")
    E(f"s_lshl_b32 {S(sH)}, {S(sKV)}, 1")
    E(f"s_add_u32 {S(sH)}, {S(sH)}, {S(sT2)}")
    E(f"s_mul_i32 {S(sRING)}, {S(sW)}, {RING_W}")
    E(f"s_add_u32 {S(sRING)}, {S(sRING)}, {RING0}")
    if args.rot:
        E(f"s_cmp_eq_u32 {S(sB)}, 7")
        E(f"s_cselect_b32 {S(sT0)}, 3, {S(sB)}")
    else:
        E(f"s_mov_b32 {S(sT0)}, 0")
    for i in range(7):
        E(f"s_add_u32 {S(sT1)}, {S(sT0)}, {i}")
        E(f"s_sub_u32 {S(sT2)}, {S(sT1)}, 7")
        E(f"s_cmp_ge_u32 {S(sT1)}, 7")
        E(f"s_cselect_b32 {S(sT1)}, {S(sT2)}, {S(sT1)}")
        E(f"s_lshl_b32 {S(sRQ + i)}, {S(sT1)}, 19")
    l = V(vL)
    E(f"v_lshrrev_b32 {V(l3)}, 3, {l}")
    E(f"v_and_b32 {V(l7)}, 7, {l}")
    E(f"v_lshrrev_b32 {V(l4)}, 4, {l}")
    E(f"s_lshl_b32 {S(sT3)}, {S(sW)}, 7")
    E(f"s_mul_i32 {S(sT0)}, {S(sW)}, {16 * 896}")
    E(f"v_mul_u32_u24 {V(t[4])}, 896, {V(l3)}")
    E(f"v_add_u32 {V(t[4])}, {S(sT0)}, {V(t[4])}")
    E(f"v_xor_b32 {V(t[5])}, {V(l7)}, {V(l4)}")
    E(f"v_lshl_add_u32 {V(vXD)}, {V(t[5])}, 4, {V(t[4])}")
    E(f"v_xor_b32 {V(t[6])}, 4, {V(t[5])}")
    E(f"v_lshl_add_u32 {V(vXD + 1)}, {V(t[6])}, 4, {V(t[4])}")
    E(f"v_add_u32 {V(vXD + 1)}, {8 * 896}, {V(vXD + 1)}")
    E(f"s_lshl_b32 {S(sT0)}, {S(sW)}, 16")
    E(f"v_lshl_add_u32 {V(t[4])}, {V(l3)}, 9, {S(sT0)}")
    for j in range(4):
        E(f"v_lshl_add_u32 {V(vKD + j)}, {V(t[5] if j % 2 == 0 else t[6])}, 4, {V(t[4])}")
        if j:
            E(f"v_add_u32 {V(vKD + j)}, {j * 3072}, {V(vKD + j)}")
    E(f"v_and_b32 {V(t[7])}, 1, {V(l4)}")
    E(f"v_lshlrev_b32 {V(t[7])}, 2, {V(t[7])}")
    E(f"v_xor_b32 {V(t[7])}, {V(l7)}, {V(t[7])}")
    E(f"v_lshl_add_u32 {V(t[7])}, {V(t[7])}, 4, {S(sT3)}")
    E(f"v_lshl_add_u32 {V(vWD)}, {V(l3)}, 13, {V(t[7])}")
    E(f"v_lshl_add_u32 {V(vVD)}, {V(l3)}, 9, {V(t[7])}")
    for j in range(1, 4):
        E(f"v_add_u32 {V(vWD + j)}, {j * (65536 - 1024)}, {V(vWD)}")
        E(f"v_add_u32 {V(vVD + j)}, {j * 3072}, {V(vVD)}")
    g.raw("s_waitcnt lgkmcnt(0)")
    E(f"s_cmp_eq_u32 {S(sBR)}, 0")
    for i in range(0, 10, 2):
        E(f"s_cselect_b64 {S(sPTR + i, 2)}, {S(sPTR + i, 2)}, {S(sPTR + 10 + i, 2)}")
    E(f"s_mul_i32 {S(sT0)}, {S(sB)}, 57344")
    srd(SRD_X, sPTR + 0, sT0, 57344)
    E(f"s_lshl_b32 {S(sT0)}, {S(sH)}, 9")
    srd(SRD_WQ, sPTR + 6, sT0, (448 * 8192, sT0))
    E(f"s_lshl_b32 {S(sT0)}, {S(sB)}, 3")
    E(f"s_add_u32 {S(sT0)}, {S(sT0)}, {S(sKV)}")
    E(f"s_lshl_b32 {S(sT0)}, {S(sT0)}, 18")
    srd(SRD_K, sPTR + 2, sT0, 262144)
    srd(SRD_V, sPTR + 4, sT0, 262144)


def prologue_b():
    l = V(vL)
    E(f"s_mov_b32 {S(sC)}, 0x{f32bits(math.log2(math.e) / 16.0):08x}")
    E(f"s_mul_i32 {S(sT0)}, {S(sH)}, 229376")
    srd(SRD_WO, sPTR + 8, sT0, 229376)
    E(f"s_lshl_b32 {S(sT0)}, {S(sBR)}, 3")
    E(f"s_add_u32 {S(sT0)}, {S(sT0)}, {S(sB)}")
    E(f"s_lshl_b32 {S(sT0)}, {S(sT0)}, 4")
    E(f"s_add_u32 {S(sT0)}, {S(sT0)}, {S(sH)}")
    E(f"s_mul_i32 {S(sT1)}, {S(sT0)}, {PART_BYTES}")
    srd(SRD_P, sPTR + 24, sT1, PART_BYTES)
    if args.stamps:
        E(f"s_lshl_b32 {S(sT1)}, {S(sT0)}, 16")
        E(f"s_add_u32 {S(sT1)}, {S(sT1)}, {64 << 20}")
        srd(SRD_D, sPTR + 24, sT1, 65536)
    for u in range(4):
        E(f"s_mov_b32 {S(sST + u)}, {u * 4096}")
    E(f"s_mov_b32 {S(sROT8)}, {S(sB)}" if args.rot else f"s_mov_b32 {S(sROT8)}, 0")
    for i in range(8):
        E(f"s_add_u32 {S(sT1)}, {S(sROT8)}, {i}")
        E(f"s_and_b32 {S(sT1)}, {S(sT1)}, 7")
        E(f"s_mul_i32 {S(sRO + i)}, {S(sT1)}, 28672")
    E(f"v_bfe_u32 {V(t[4])}, {l}, 1, 3")
    E(f"v_xor_b32 {V(t[4])}, {V(t[4])}, {V(l4)}")
    E(f"v_xor_b32 {V(t[5])}, 4, {V(t[4])}")
    E(f"v_min_u32 {V(t[4])}, 6, {V(t[4])}")
    E(f"v_min_u32 {V(t[5])}, 6, {V(t[5])}")
    E(f"v_and_b32 {V(t[6])}, 1, {l}")
    E(f"v_lshlrev_b32 {V(t[6])}, 4, {V(t[6])}")
    E(f"v_mul_u32_u24 {V(t[7])}, 896, {V(l4)}")
    E(f"s_mul_i32 {S(sT0)}, {S(sW)}, 224")
    E(f"v_add3_u32 {V(t[6])}, {V(t[6])}, {V(t[7])}, {S(sT0)}")
    for j in range(4):
        E(f"v_lshl_add_u32 {V(vOD + j)}, {V(t[4] if j < 2 else t[5])}, 5, {V(t[6])}")
        if j:
            E(f"v_add_u32 {V(vOD + j)}, {j * (3584 - 1024)}, {V(vOD + j)}")
    n, hf = t[4], t[5]
    E(f"v_and_b32 {V(n)}, 31, {l}")
    E(f"v_lshrrev_b32 {V(hf)}, 5, {l}")
    E(f"v_lshrrev_b32 {V(t[6])}, 3, {V(n)}")
    E(f"v_lshlrev_b32 {V(t[6])}, 10, {V(t[6])}")
    E(f"v_lshl_add_u32 {V(t[6])}, {V(l7)}, 7, {V(t[6])}")
    E(f"v_bfe_u32 {V(t[7])}, {V(n)}, 1, 3")
    E(f"v_xor_b32 {V(t[7])}, {V(t[7])}, {V(hf)}")
    for i in range(4):
        E(f"v_xor_b32 {V(t[8])}, {2 * i}, {V(t[7])}")
        E(f"v_lshl_add_u32 {V(vRBx + i)}, {V(t[8])}, 4, {V(t[6])}")
        E(f"v_add_u32 {V(vRBk + i)}, {S(sRING)}, {V(vRBx + i)}")
    r, c = t[6], t[7]
    E(f"v_bfe_u32 {V(r)}, {l}, 2, 2")
    E(f"v_and_b32 {V(c)}, 3, {l}")
    E(f"v_lshlrev_b32 {V(t[8])}, 7, {V(r)}")
    E(f"v_lshrrev_b32 {V(t[9])}, 1, {V(r)}")
    E(f"v_lshl_add_u32 {V(t[8])}, {V(t[9])}, 6, {V(t[8])}")
    E(f"v_and_b32 {V(t[9])}, 1, {V(l4)}")
    E(f"v_lshl_add_u32 {V(t[8])}, {V(t[9])}, 5, {V(t[8])}")
    E(f"v_and_b32 {V(t[9])}, 1, {V(c)}")
    E(f"v_lshl_add_u32 {V(t[8])}, {V(t[9])}, 4, {V(t[8])}")
    E(f"v_lshrrev_b32 {V(t[9])}, 1, {V(c)}")
    E(f"v_lshl_add_u32 {V(t[8])}, {V(t[9])}, 3, {V(t[8])}")
    E(f"v_add_u32 {V(t[8])}, {S(sRING)}, {V(t[8])}")
    E(f"v_lshl_add_u32 {V(vTRw)}, {V(hf)}, 10, {V(t[8])}")
    E(f"v_xor_b32 {V(vTRw + 1)}, 64, {V(vTRw)}")
    E(f"v_lshl_add_u32 {V(vTRv)}, {V(hf)}, 9, {V(t[8])}")
    E(f"v_xor_b32 {V(vTRv + 1)}, 64, {V(vTRv)}")
    E(f"v_lshlrev_b32 {V(t[8])}, 11, {V(l4)}")
    E(f"v_lshl_add_u32 {V(t[8])}, {V(r)}, 8, {V(t[8])}")
    E(f"v_lshl_add_u32 {V(t[8])}, {V(c)}, 3, {V(t[8])}")
    E(f"v_add_u32 {V(t[8])}, {S(sRING)}, {V(t[8])}")
    E(f"v_and_b32 {V(t[9])}, 1, {V(l4)}")
    E(f"v_lshl_or_b32 {V(t[9])}, {V(t[9])}, 2, {V(r)}")
    E(f"v_lshl_add_u32 {V(vTRo)}, {V(t[9])}, 5, {V(t[8])}")
    for m in range(1, 7):
        E(f"v_xor_b32 {V(vTRo + m)}, {m * 32}, {V(vTRo)}")
    E(f"v_lshlrev_b32 {V(vLin)}, 4, {l}")
    E(f"s_lshl_b32 {S(sT0)}, {S(sW)}, 13")
    E(f"v_add_u32 {V(vQW)}, {S(sT0)}, {V(vLin)}")
    E(f"s_lshl_b32 {S(sT1)}, {S(sW)}, 14")
    E(f"v_add_u32 {V(vPW)}, {S(sT1)}, {V(vLin)}")
    E(f"v_lshrrev_b32 {V(t[8])}, 4, {V(n)}")
    E(f"v_lshlrev_b32 {V(t[8])}, 10, {V(t[8])}")
    E(f"v_lshl_add_u32 {V(t[8])}, {V(hf)}, 8, {V(t[8])}")
    E(f"v_and_b32 {V(t[9])}, 15, {l}")
    E(f"v_lshl_add_u32 {V(t[8])}, {V(t[9])}, 4, {V(t[8])}")
    for mt in range(2):
        E(f"s_lshl_b32 {S(sT1)}, {S(sW)}, 1")
        E(f"s_add_u32 {S(sT1)}, {S(sT1)}, {8 + mt}")
        E(f"s_sub_u32 {S(sT1)}, {S(sT1)}, {S(sROT8)}")
        E(f"s_and_b32 {S(sT1)}, {S(sT1)}, 7")
        E(f"s_lshl_b32 {S(sT1)}, {S(sT1)}, 12")
        E(f"v_add_u32 {V(vOW if mt == 0 else vOW2)}, {S(sT1)}, {V(t[8])}")
    E(f"s_lshl_b32 {S(sT0)}, {S(sW)}, 2")
    E(f"v_add_u32 {V(vSTw)}, {S(sT0)}, {V(vLin)}")
    E(f"v_lshlrev_b32 {V(vSTr)}, 4, {V(n)}")
    E(f"v_lshlrev_b32 {V(vSMr)}, 4, {V(t[9])}")
    E(f"s_mul_i32 {S(sT0)}, {S(sW)}, 14336")
    E(f"v_add_u32 {V(vOut)}, {S(sT0)}, {V(vLin)}")


def dma_x():
    E(f"s_lshl_b32 {S(sT0)}, {S(sW)}, 11")
    if not args.xrot:
        for cg in range(7):
            E(f"s_lshr_b32 {S(sOFF)}, {S(sRQ + cg)}, 12")
            for par in range(2):
                E(f"s_add_u32 m0, {S(sT0)}, {X_BASE + (cg * 8 + par) * 1024}")
                E(f"buffer_load_dwordx4 {V(vXD + par)}, {S(SRD_X, 4)}, {S(sOFF)} offen lds", tag="X")
        return
    E(f"s_mul_i32 {S(sT1)}, {S(sH)}, 37")
    E(f"s_lshr_b32 {S(sT1)}, {S(sT1)}, 8")
    E(f"s_mul_i32 {S(sT1)}, {S(sT1)}, 7")
    E(f"s_sub_u32 {S(sT1)}, {S(sH)}, {S(sT1)}")
    E(f"s_lshr_b32 {S(sT2)}, {S(sRQ)}, 19")
    E(f"s_add_u32 {S(sT2)}, {S(sT2)}, {S(sT1)}")
    E(f"s_sub_u32 {S(sT3)}, {S(sT2)}, 7")
    E(f"s_cmp_ge_u32 {S(sT2)}, 7")
    E(f"s_cselect_b32 {S(sT2)}, {S(sT3)}, {S(sT2)}")
    for i in range(7):
        E(f"s_lshl_b32 {S(sOFF)}, {S(sT2)}, 7")
        E(f"s_lshl_b32 {S(sT3)}, {S(sT1)}, 13")
        E(f"s_add_u32 m0, {S(sT3)}, {S(sT0)}")
        E(f"buffer_load_dwordx4 {V(vXD)}, {S(SRD_X, 4)}, {S(sOFF)} offen lds", tag="X")
        E(f"s_add_u32 m0, m0, 1024")
        if i < 6:
            E(f"s_add_u32 {S(sT1)}, {S(sT1)}, 1")
            E(f"s_cmp_eq_u32 {S(sT1)}, 7")
            E(f"s_cselect_b32 {S(sT1)}, 0, {S(sT1)}")
        E(f"buffer_load_dwordx4 {V(vXD + 1)}, {S(SRD_X, 4)}, {S(sOFF)} offen lds", tag="X")
        if i < 6:
            E(f"s_add_u32 {S(sT2)}, {S(sT2)}, 1")
            E(f"s_cmp_eq_u32 {S(sT2)}, 7")
            E(f"s_cselect_b32 {S(sT2)}, 0, {S(sT2)}")


def cons_pos(u):
    k, i = u
    return {"wq": 0, "k": 14, "v": 30, "wo": 46}[k] + i


INF = 1e9
chunks = []
for b in range(64, 128, 16):
    chunks.append(("v", b, [(0, INF)]))
for b in range(160, 240, 16):
    chunks.append(("a", b, [(0, INF)]))
for b in range(0, 128, 16):
    chunks.append(("a", b, [(0, 13.5), (29.6, INF)]))
for b in range(192, 240, 16):
    chunks.append(("v", b, [(0, 22), (29.9, 46)]))
chunks.append(("v", 240, [(0, 22), (29.9, INF)]))


class Engine:
    def __init__(self, order):
        self.order = order
        self.qd = 0; self.dsub = 0
        self.qr = 0; self.rsub = 0
        self.slot_owner = [None] * NSLOT
        self.slot_last = [None] * NSLOT
        self.slot = {}; self.tdma = {}; self.regs = {}; self.done = set()
        self.chunk_busy = [None] * len(chunks)
        self.last_dma = -INF
        self.pos = 0.0
        self.rlist = None
        self.land = {}
        self.setup_done = False
        self.urgent = False
        self.last_land = 3000

    def nblk(self, u): return 8 if u[0] == "wo" else 4

    def find_slots(self, u, force):
        need = 2 if u[0] == "wo" else 1
        best = None
        for s in range(0, NSLOT, need):
            if all(self.slot_owner[s + k] is None for k in range(need)):
                tl = max((self.slot_last[s + k][1] if self.slot_last[s + k] else -INF) for k in range(need))
                if not force and now[0] - tl < 100:
                    continue
                if best is None or tl < best[1]:
                    best = (s, tl)
        return None if best is None else best[0]

    def find_chunks(self, u):
        need = 2 if u[0] == "wo" else 1
        cp = cons_pos(u)
        cand = []
        for i, (k, b, wins) in enumerate(chunks):
            if self.chunk_busy[i] is not None:
                continue
            for (a, z) in wins:
                if a <= self.pos and cp < z:
                    cand.append((z, i))
                    break
        if len(cand) < need:
            return None
        cand.sort()
        return [i for _, i in cand[:need]]

    def dma_params(self, u, half):
        k, i = u
        nt = (" " + args.kvfl.replace("_", " ")) if args.kvfl else ""
        if k == "wq":
            return SRD_WQ, vWD, (sRQ + i // 2, (i % 2) * 262144), ""
        if k == "k":
            return SRD_K, vKD, (i // 4) * 16384 + (i % 4) * 128, nt
        if k == "v":
            if args.vfl is not None:
                nt = (" " + args.vfl) if args.vfl else ""
            return SRD_V, vVD, i * 16384, nt
        return SRD_WO, vOD, (sRO + i, half * 14336), ""

    def step_dma(self, force=False, split=False):
        if self.qd >= len(self.order):
            return 0
        if self.dsub == 0 and not self.setup_done:
            skipped = set()
            found = None
            for ci in range(self.qd, min(self.qd + 4, len(self.order))):
                u = self.order[ci]
                if u[0] in skipped:
                    continue
                s = self.find_slots(u, force)
                if s is not None:
                    found = (ci, s)
                    break
                skipped.add(u[0])
            if found is None:
                return 0
            ci, s = found
            self.order.insert(self.qd, self.order.pop(ci))
            u = self.order[self.qd]
            for k in range(self.nblk(u) // 4):
                if self.slot_last[s + k]:
                    g.wait_ds(("A", self.slot_last[s + k][0]))
                self.slot_owner[s + k] = u
            self.slot[u] = s
        u = self.order[self.qd]
        half, j = self.dsub // 4, self.dsub % 4
        srd_, vo, so, fl = self.dma_params(u, half)
        n = 0
        if j == 0 and not self.setup_done:
            E(f"s_add_u32 m0, {S(sRING)}, {(self.slot[u] + half) * 4096}")
            if isinstance(so, tuple):
                E(f"s_add_u32 {S(sOFF)}, {S(so[0])}, {so[1]}")
            else:
                E(f"s_mov_b32 {S(sOFF)}, {so}")
            n = 2
            if split:
                self.setup_done = True
                return n
        self.setup_done = False
        off = f" offset:{j * 1024}" if j else ""
        E(f"buffer_load_dwordx4 {V(vo + j)}, {S(srd_, 4)}, {S(sOFF)} offen{off}{fl} lds", tag=("G", u))
        self.last_dma = now[0]
        self.dsub += 1
        if self.dsub == self.nblk(u):
            self.tdma[u] = now[0]
            kv = u[0] in ("k", "v")
            lat = args.latk if kv else args.latw
            pace = (args.pacek if kv else args.pacew) * self.nblk(u) // 4
            self.land[u] = max(now[0] + lat, self.last_land + pace)
            self.last_land = self.land[u]
            self.dsub = 0
            self.qd += 1
        return n + 1

    def reg(self, u, idx, n):
        ch = self.regs[u][idx // 16]
        k, b, _ = chunks[ch]
        return R(k, b + idx % 16, n)

    def read_list(self, u):
        k, i = u
        so = self.slot[u] * 4096
        out = []
        if k in ("wq", "v"):
            base = vTRw if k == "wq" else vTRv
            for ks in range(2):
                for mt in range(2):
                    for r2 in range(2):
                        off = so + ks * 2048 + r2 * (512 if k == "wq" else 1024)
                        out.append(f"ds_read_b64_tr_b16 {self.reg(u, (ks * 2 + mt) * 4 + r2 * 2, 2)}, {V(base + mt)} offset:{off}")
        elif k == "k":
            for q in range(4):
                out.append(f"ds_read_b128 {self.reg(u, q * 4, 4)}, {V(vRBk + q)} offset:{so}")
        else:
            for m in range(7):
                for r2 in range(2):
                    out.append(f"ds_read_b64_tr_b16 {self.reg(u, m * 4 + r2 * 2, 2)}, {V(vTRo + m)} offset:{so + r2 * 1024}")
        return out

    def step_read(self, force=False, nmax=None):
        if self.qr >= len(self.order):
            return False
        u = self.order[self.qr]
        if u not in self.tdma:
            return False
        if self.rlist is None:
            if not force:
                urgent = self.urgent and any(cons_pos(x) <= self.pos + 1 for x in self.order[self.qr:self.qr + 3])
                if now[0] < self.land[u] and not urgent:
                    return False
                if args.noabsorb and cons_pos(u) > self.pos + 1.5:
                    return False
            ch = self.find_chunks(u)
            if ch is None:
                if force:
                    raise RuntimeError(f"no chunk for {u} at pos {self.pos}")
                return False
            for c in ch:
                self.chunk_busy[c] = u
            self.regs[u] = ch
            self.rlist = self.read_list(u)
            g.wait_vm(("G", u))
            if now[0] < self.land[u]:
                now[0] = self.land[u]; shadow[0] = 0
            if args.verbose:
                print(f"read {u} at t={now[0]:.0f} pos={self.pos} (dma t={self.tdma[u]:.0f}) {'FORCED' if force else ''}")
        n = args.rdtick if nmax is None else nmax
        for _ in range(n):
            if not self.rlist:
                break
            E(self.rlist.pop(0), tag=("A", u))
        if not self.rlist:
            self.rlist = None
            s = self.slot[u]
            for k in range(self.nblk(u) // 4):
                self.slot_owner[s + k] = None
                self.slot_last[s + k] = (u, now[0])
            self.done.add(u)
            self.qr += 1
        return True

    def tick(self, budget=4):
        used = 0
        if now[0] - self.last_dma >= args.dgap:
            used = self.step_dma(split=(budget < 3))
        if budget - used > 0:
            self.step_read(nmax=budget - used)

    def force(self, u):
        guard = 0
        while u not in self.done:
            guard += 1
            assert guard < 10000, "engine stuck"
            nxt = self.order[self.qr]
            if self.rlist is None and (nxt not in self.land or now[0] < self.land[nxt]):
                while self.step_dma(force=True):
                    pass
            if self.step_read(force=True, nmax=99):
                continue
            if not self.step_dma(force=True):
                raise RuntimeError("engine deadlock")

    def release(self, u):
        for c in self.regs[u]:
            self.chunk_busy[c] = None


def make_order():
    wq = [("wq", i) for i in range(14)]
    k = [("k", i) for i in range(16)]
    v = [("v", i) for i in range(16)]
    wo = [("wo", i) for i in range(8)]
    if args.kearly:
        o = wq[:args.kearly]
        rest = wq[args.kearly:]
        ki = 0
        for n, w in enumerate(rest):
            if n % args.kratio == 0:
                o.append(k[ki]); ki += 1
            o.append(w)
        o += k[ki:]
    else:
        o = wq + k
    if args.woearly < 16:
        o += v[:args.woearly]
        wi = 0
        for n, x in enumerate(v[args.woearly:]):
            if n % args.woratio == 0 and wi < 8:
                o.append(wo[wi]); wi += 1
            o.append(x)
        o += wo[wi:]
    else:
        o += v + wo
    return o


eng = Engine(make_order())


def C(text, tag=None):
    E(text, tag)
    eng.urgent = True
    eng.tick()
    eng.urgent = False


vcount = [0]
def CV(text):
    E(text)
    vcount[0] += 1
    if vcount[0] % 4 == 0:
        eng.tick(3)


def barrier():
    g.barrier()
    now[0] += 60


M32 = "v_mfma_f32_32x32x16_bf16"
M16 = "v_mfma_f32_16x16x32_bf16"


def bbuf(i):
    return BBUF + (i % 2) * 16


def mfma_step(mf, breads, extra=None):
    for k, m in enumerate(mf):
        E(m)
        eng.urgent = k >= args.urg32
        used = 0
        if k >= 1 and breads:
            for _ in range(2):
                if breads:
                    E(breads.pop(0)); used += 1
        if extra:
            for _ in range(args.xper):
                if extra:
                    E(extra.pop(0)); used += 1
        eng.tick(max(args.b32 - used, 1))
    eng.urgent = False
    for b in breads:
        E(b)


def fused_tail():
    r = g.raw
    sGRP, sOLD, sIT, sEXTRA, sCUR, sSKIP = 80, 81, 82, 83, 84, 85
    SRD_G, SRD_O = 8, 12
    g.wait_vm(); g.wait_ds()
    r("s_barrier")
    stamp()
    E(f"s_lshl_b32 {S(sGRP)}, {S(sBR)}, 3")
    E(f"s_add_u32 {S(sGRP)}, {S(sGRP)}, {S(sB)}")
    r(f"s_cmp_lg_u32 {S(sW)}, 0")
    r("s_cbranch_scc1 L_WAIT")
    E(f"s_lshl_b32 {S(sT0)}, {S(sGRP)}, 4")
    E(f"v_mov_b32 {V(vT)}, {S(sT0)}")
    E(f"v_mov_b32 {V(vT + 1)}, 1")
    E(f"s_mov_b32 {S(sEXTRA)}, 0")
    E(f"s_mov_b32 {S(sSKIP)}, 0")
    r("s_mov_b64 exec, 1")
    r(f"global_atomic_add {V(vT + 2)}, {V(vT)}, {V(vT + 1)}, {S(sPTR + 22, 2)} sc0")
    r("s_waitcnt vmcnt(0)")
    r(f"v_readfirstlane_b32 {S(sOLD)}, {V(vT + 2)}")
    r("s_nop 3")
    r(f"s_and_b32 {S(sT0)}, {S(sOLD)}, 0xff")
    r(f"s_cmp_eq_u32 {S(sT0)}, 15")
    r("s_cbranch_scc0 L_POLL0")
    r(f"s_bfe_u32 {S(sEXTRA)}, {S(sOLD)}, 0x100008")
    r("s_branch L_GO")
    r("L_POLL0:")
    r(f"s_mov_b32 {S(sIT)}, 0")
    r("L_POLL:")
    r(f"s_sleep {args.sleep}")
    r(f"global_load_dword {V(vT + 2)}, {V(vT)}, {S(sPTR + 22, 2)} sc1")
    r("s_waitcnt vmcnt(0)")
    r(f"v_readfirstlane_b32 {S(sOLD)}, {V(vT + 2)}")
    r("s_nop 3")
    r(f"s_and_b32 {S(sT0)}, {S(sOLD)}, 0xff")
    r(f"s_cmp_eq_u32 {S(sT0)}, 16")
    r("s_cbranch_scc1 L_GO")
    r(f"s_add_u32 {S(sIT)}, {S(sIT)}, 1")
    r(f"s_cmp_lt_u32 {S(sIT)}, {args.maxpoll}")
    r("s_cbranch_scc1 L_POLL")
    r(f"s_add_u32 {S(sT0)}, {S(sH)}, 8")
    r(f"s_lshl_b32 {S(sT0)}, 1, {S(sT0)}")
    r(f"v_mov_b32 {V(vT + 1)}, {S(sT0)}")
    r(f"global_atomic_add {V(vT + 2)}, {V(vT)}, {V(vT + 1)}, {S(sPTR + 22, 2)} sc0")
    r("s_waitcnt vmcnt(0)")
    r(f"v_readfirstlane_b32 {S(sOLD)}, {V(vT + 2)}")
    r("s_nop 3")
    r(f"s_and_b32 {S(sT0)}, {S(sOLD)}, 0xff")
    r(f"s_cmp_eq_u32 {S(sT0)}, 16")
    r("s_cbranch_scc1 L_GO")
    r(f"s_mov_b32 {S(sSKIP)}, 1")
    r("L_GO:")
    r(f"s_lshl_b32 {S(sT0)}, {S(sSKIP)}, 16")
    r(f"s_or_b32 {S(sT0)}, {S(sT0)}, {S(sEXTRA)}")
    r(f"v_mov_b32 {V(vT + 1)}, {S(sT0)}")
    r(f"v_mov_b32 {V(vT)}, 0")
    r(f"ds_write_b32 {V(vT)}, {V(vT + 1)} offset:{STATS}")
    r("s_waitcnt lgkmcnt(0)")
    r("s_mov_b64 exec, -1")
    r("L_WAIT:")
    E(f"s_mul_i32 {S(sT0)}, {S(sGRP)}, {16 * PART_BYTES}")
    srd(SRD_G, sPTR + 24, sT0, 16 * PART_BYTES)
    E(f"s_mov_b32 {S(SRD_O)}, {S(sPTR + 20)}")
    E(f"s_and_b32 {S(SRD_O + 1)}, {S(sPTR + 21)}, 0xffff")
    E(f"s_mov_b32 {S(SRD_O + 2)}, {8 * 64 * 896 * 2}")
    E(f"s_mov_b32 {S(SRD_O + 3)}, 0x00020000")
    E(f"v_lshrrev_b32 {V(vT + 4)}, 5, {V(vL)}")
    E(f"s_lshl_b32 {S(sT0)}, {S(sW)}, 1")
    E(f"v_add_u32 {V(vT + 4)}, {S(sT0)}, {V(vT + 4)}")
    E(f"v_min_u32 {V(vT + 4)}, 6, {V(vT + 4)}")
    E(f"v_and_b32 {V(vT + 5)}, 31, {V(vL)}")
    E(f"s_mul_i32 {S(sT2)}, {S(sB)}, 114688")
    E(f"s_mul_i32 {S(sT3)}, {S(sBR)}, 896")
    E(f"s_add_u32 {S(sT2)}, {S(sT2)}, {S(sT3)}")
    E(f"s_mov_b32 {S(sT3)}, 28672")
    r("s_barrier")
    E(f"v_mov_b32 {V(vT)}, 0")
    r(f"ds_read_b32 {V(vT + 1)}, {V(vT)} offset:{STATS}")
    r("s_waitcnt lgkmcnt(0)")
    r(f"v_readfirstlane_b32 {S(sEXTRA)}, {V(vT + 1)}")
    r("s_nop 3")
    r(f"s_lshr_b32 {S(sSKIP)}, {S(sEXTRA)}, 16")
    r(f"s_and_b32 {S(sEXTRA)}, {S(sEXTRA)}, 0xffff")
    r(f"s_cmp_lg_u32 {S(sSKIP)}, 0")
    r("s_cbranch_scc1 L_DONE")
    r(f"s_mov_b32 {S(sCUR)}, {S(sH)}")
    stamp()
    r("L_SLICE:")
    h = Gen()
    e = h.emit
    hb, off, blk, l64, wq_, j_, ob = vT + 6, vT + 7, vT + 8, vT + 9, vT + 10, vT + 11, vT + 12
    e(f"s_mul_i32 {S(sT0)}, {S(sCUR)}, 7")
    e(f"v_add_u32 {V(hb)}, {S(sT0)}, {V(vT + 4)}")
    e(f"v_lshlrev_b32 {V(off)}, 9, {V(hb)}")
    e(f"v_lshl_add_u32 {V(off)}, {V(vT + 5)}, 4, {V(off)}")
    D = 64
    for hh in range(16):
        e(f"s_mov_b32 {S(sT1)}, {hh * PART_BYTES}")
        e(f"buffer_load_dwordx4 {V(D + hh * 4, 4)}, {V(off)}, {S(SRD_G, 4)}, {S(sT1)} offen sc1")
    e(f"v_lshrrev_b32 {V(blk)}, 1, {V(hb)}")
    e(f"v_and_b32 {V(l64)}, 1, {V(hb)}")
    e(f"v_lshl_add_u32 {V(l64)}, {V(l64)}, 5, {V(vT + 5)}")
    e(f"v_mul_u32_u24 {V(wq_)}, 4682, {V(blk)}")
    e(f"v_lshrrev_b32 {V(wq_)}, 16, {V(wq_)}")
    e(f"v_mul_u32_u24 {V(j_)}, 14, {V(wq_)}")
    e(f"v_sub_u32 {V(j_)}, {V(blk)}, {V(j_)}")
    e(f"v_mul_u32_u24 {V(ob)}, 224, {V(wq_)}")
    e(f"v_lshrrev_b32 {V(blk)}, 1, {V(j_)}")
    e(f"v_lshl_add_u32 {V(ob)}, {V(blk)}, 5, {V(ob)}")
    e(f"v_and_b32 {V(j_)}, 1, {V(j_)}")
    e(f"v_mul_u32_u24 {V(j_)}, 57344, {V(j_)}")
    e(f"v_add3_u32 {V(ob)}, {V(ob)}, {V(j_)}, {S(sT2)}")
    e(f"v_and_b32 {V(j_)}, 15, {V(l64)}")
    e(f"v_mul_u32_u24 {V(j_)}, 1792, {V(j_)}")
    e(f"v_lshrrev_b32 {V(l64)}, 4, {V(l64)}")
    e(f"v_lshl_add_u32 {V(j_)}, {V(l64)}, 3, {V(j_)}")
    e(f"v_add_u32 {V(ob)}, {V(ob)}, {V(j_)}")
    AC, TM = 128, 136
    for hh in range(16):
        for k in range(4):
            src = D + hh * 4 + k
            if hh == 0:
                e(f"v_lshlrev_b32 {V(AC + 2 * k)}, 16, {V(src)}")
                e(f"v_and_b32 {V(AC + 1 + 2 * k)}, 0xffff0000, {V(src)}")
            else:
                e(f"v_lshlrev_b32 {V(TM + (k % 2) * 2)}, 16, {V(src)}")
                e(f"v_and_b32 {V(TM + 1 + (k % 2) * 2)}, 0xffff0000, {V(src)}")
                e(f"v_pk_add_f32 {V(AC + 2 * k, 2)}, {V(AC + 2 * k, 2)}, {V(TM + (k % 2) * 2, 2)}")
    for k in range(4):
        e(f"v_cvt_pk_bf16_f32 {V(TM + k)}, {V(AC + 2 * k)}, {V(AC + 1 + 2 * k)}")
    e(f"buffer_store_dwordx2 {V(TM, 2)}, {V(ob)}, {S(SRD_O, 4)}, 0 offen")
    e(f"buffer_store_dwordx2 {V(TM + 2, 2)}, {V(ob)}, {S(SRD_O, 4)}, {S(sT3)} offen")
    for i in h.ins:
        g.ins.append(i)
    r(f"s_cmp_eq_u32 {S(sEXTRA)}, 0")
    r("s_cbranch_scc1 L_DONE")
    r(f"s_ff1_i32_b32 {S(sCUR)}, {S(sEXTRA)}")
    r(f"s_bitset0_b32 {S(sEXTRA)}, {S(sCUR)}")
    r("s_waitcnt vmcnt(0)")
    r("s_branch L_SLICE")
    r("L_DONE:")
    g.vm = [(set(), "tail")]


def k1():
    prologue_a()
    stamp()
    dma_x()
    for _ in range(4 * args.init):
        eng.step_dma(force=True)
    prologue_b()
    if args.wowarm == 2:
        E(f"v_lshlrev_b32 {V(vT + 15)}, 7, v0")
        E(f"buffer_load_dword {A(255)}, {V(vT + 15)}, {S(SRD_WO, 4)}, {S(sRO)} offen", tag="warm")
    g.wait_vm("X")
    g.raw("s_barrier")
    now[0] = max(now[0], 3000)
    stamp()
    def xb_reads(G):
        out = []
        bb = bbuf(G)
        for ks2 in range(2):
            ks = 2 * G + ks2
            for nt in range(2):
                off = X_BASE + ((ks >> 2) * 8 + 4 * nt) * 1024
                out.append(f"ds_read_b128 {A(bb + (ks2 * 2 + nt) * 4, 4)}, {V(vRBx + (ks & 3))} offset:{off}")
        return out
    for x in xb_reads(0):
        E(x)
    for G in range(14):
        u = ("wq", G)
        eng.pos = G
        eng.force(u)
        bb = bbuf(G)
        mf = []
        for ks in range(2):
            for mt in range(2):
                for nt in range(2):
                    acc = V(ACC + (mt * 2 + nt) * 16, 16)
                    c = "0" if (G == 0 and ks == 0) else acc
                    mf.append(f"{M32} {acc}, {eng.reg(u, (ks * 2 + mt) * 4, 4)}, {A(bb + (ks * 2 + nt) * 4, 4)}, {c}")
        eng.pos = G + 0.4
        if G + 1 < 14:
            pass
        mfma_step(mf, xb_reads(G + 1) if G + 1 < 14 else [])
        eng.release(u)
    eng.pos = 13.5
    stamp()
    def cvt_inplace():
        for mt in range(2):
            for nt in range(2):
                for tt in range(2):
                    b = ACC + (mt * 2 + nt) * 16 + 8 * tt
                    for k in range(4):
                        CV(f"v_cvt_pk_bf16_f32 {V(b + k)}, {V(b + 2 * k)}, {V(b + 2 * k + 1)}")
    cvt_inplace()
    barrier()
    for mt in range(2):
        for nt in range(2):
            for tt in range(2):
                b = ACC + (mt * 2 + nt) * 16 + 8 * tt
                E(f"ds_write_b128 {V(vQW)}, {V(b, 4)} offset:{X_BASE + (2 * mt + tt) * 2048 + nt * 1024}")
    eng.urgent = True
    for _ in range(4):
        eng.tick()
    eng.urgent = False
    barrier()
    stamp()
    def q_reads(cg):
        out = []
        for i in range(4):
            ks = cg * 4 + i
            for nt in range(2):
                out.append(f"ds_read_b128 {A(QREG + (ks * 2 + nt) * 4, 4)}, {V(vLin)} offset:{X_BASE + (ks * 2 + nt) * 1024}")
        return out
    def Sreg(T, nt, r):
        return ACC + (T * 2 + nt) * 16 + r
    vTM = [vT + k for k in range(8)]
    vTS = [vT + 8 + k for k in range(8)]
    def tile_exp(T):
        out = []
        for nt in range(2):
            vs = [Sreg(T, nt, r) for r in range(16)]
            m, sm_ = vTM[T * 2 + nt], vTS[T * 2 + nt]
            out.append(f"v_max3_f32 {V(m)}, {V(vs[0])}, {V(vs[1])}, {V(vs[2])}")
            out.append(f"v_max3_f32 {V(sm_)}, {V(vs[3])}, {V(vs[4])}, {V(vs[5])}")
            for k in range(6, 14, 4):
                out.append(f"v_max3_f32 {V(m)}, {V(m)}, {V(vs[k])}, {V(vs[k + 1])}")
                out.append(f"v_max3_f32 {V(sm_)}, {V(sm_)}, {V(vs[k + 2])}, {V(vs[k + 3])}")
            out.append(f"v_max3_f32 {V(m)}, {V(m)}, {V(vs[14])}, {V(vs[15])}")
            out.append(f"v_max_f32 {V(m)}, {V(m)}, {V(sm_)}")
            out.append(f"v_mul_f32 {V(m)}, {S(sC)}, {V(m)}")
        for nt in range(2):
            vs = [Sreg(T, nt, r) for r in range(16)]
            m, sm_ = vTM[T * 2 + nt], vTS[T * 2 + nt]
            for h in range(2):
                rs = vs[8 * h:8 * h + 8]
                for r in rs:
                    out.append(f"v_fma_f32 {V(r)}, {V(r)}, {S(sC)}, -{V(m)}")
                for r in rs:
                    out.append(f"v_exp_f32 {V(r)}, {V(r)}")
            out.append(f"v_add_f32 {V(sm_)}, {V(vs[0])}, {V(vs[1])}")
            for k in range(2, 16):
                out.append(f"v_add_f32 {V(sm_)}, {V(sm_)}, {V(vs[k])}")
        return out
    for x in q_reads(0):
        E(x)
    pending = []
    for i in range(16):
        u = ("k", i)
        eng.pos = 14 + i
        eng.force(u)
        T, cg = i // 4, i % 4
        mf = []
        for k4 in range(4):
            ks = cg * 4 + k4
            for nt in range(2):
                acc = V(ACC + (T * 2 + nt) * 16, 16)
                c = "0" if ks == 0 else acc
                mf.append(f"{M32} {acc}, {eng.reg(u, k4 * 4, 4)}, {A(QREG + (ks * 2 + nt) * 4, 4)}, {c}")
        eng.pos = 14 + i + 0.4
        if cg == 0 and T > 0:
            assert not pending
            E(mf.pop(0)); eng.tick(args.b32); E(mf.pop(0)); eng.tick(args.b32)
            pending = tile_exp(T - 1)
        mfma_step(mf, q_reads(cg + 1) if (T == 0 and cg < 3) else [], pending)
        if cg == 3:
            for x in pending:
                CV(x)
            pending = []
        eng.release(u)
    eng.pos = 29.6
    stamp()
    if args.wowarm == 1:
        E(f"v_lshlrev_b32 {V(vT + 15)}, 7, v0")
        E(f"buffer_load_dword {A(255)}, {V(vT + 15)}, {S(SRD_WO, 4)}, {S(sRO)} offen", tag="warm")
    lst = tile_exp(3)
    nmax = 2 * 9
    for x in lst[:nmax]:
        CV(x)
    mA, mB = vRBx, vRBx + 1
    for nt, d in ((0, mA), (1, mB)):
        E(f"v_max3_f32 {V(d)}, {V(vTM[nt])}, {V(vTM[2 + nt])}, {V(vTM[4 + nt])}")
        E(f"v_max_f32 {V(d)}, {V(d)}, {V(vTM[6 + nt])}")
    E(f"v_permlane32_swap_b32 {V(mA)}, {V(mB)}")
    E(f"v_max_f32 {V(mA)}, {V(mA)}, {V(mB)}")
    E(f"ds_write_b32 {V(vSTw)}, {V(mA)} offset:{STATS}")
    half = nmax + (len(lst) - nmax) // 2
    for x in lst[nmax:half]:
        CV(x)
    barrier()
    st0, st1 = vXD, vWD
    E(f"ds_read_b128 {V(vWD, 4)}, {V(vSTr)} offset:{STATS}")
    E(f"ds_read_b128 {V(vKD, 4)}, {V(vSTr)} offset:{STATS + 512}")
    for x in lst[half:]:
        CV(x)
    for b, d in ((vWD, mA), (vKD, mB)):
        E(f"v_max3_f32 {V(d)}, {V(b)}, {V(b + 1)}, {V(b + 2)}")
        E(f"v_max_f32 {V(d)}, {V(d)}, {V(b + 3)}")
    barrier()
    for T in range(4):
        for nt, d in ((0, mA), (1, mB)):
            E(f"v_sub_f32 {V(vTM[T * 2 + nt])}, {V(vTM[T * 2 + nt])}, {V(d)}")
    for k in range(8):
        E(f"v_exp_f32 {V(vTM[k])}, {V(vTM[k])}")
    sm = [vRBx + 2, vRBx + 3]
    for nt in range(2):
        E(f"v_mul_f32 {V(sm[nt])}, {V(vTS[nt])}, {V(vTM[nt])}")
        for T in range(1, 4):
            E(f"v_fmac_f32 {V(sm[nt])}, {V(vTS[T * 2 + nt])}, {V(vTM[T * 2 + nt])}")
    E(f"v_permlane32_swap_b32 {V(sm[0])}, {V(sm[1])}")
    E(f"v_add_f32 {V(sm[0])}, {V(sm[0])}, {V(sm[1])}")
    for T in range(4):
        for nt in range(2):
            f = vTM[T * 2 + nt]
            fp = f & ~1
            sel = f & 1
            for tt in range(2):
                rs = [Sreg(T, nt, 8 * tt + e) for e in range(8)]
                for k in range(4):
                    CV(f"v_pk_mul_f32 {V(rs[2 * k], 2)}, {V(rs[2 * k], 2)}, {V(fp, 2)} op_sel:[0,{sel}] op_sel_hi:[1,{sel}]")
                for k in range(4):
                    CV(f"v_cvt_pk_bf16_f32 {V(rs[k])}, {V(rs[2 * k])}, {V(rs[2 * k + 1])}")
                E(f"ds_write_b128 {V(vPW)}, {V(rs[0], 4)} offset:{X_BASE + (2 * T + tt) * 2048 + nt * 1024}")
    eng.pos = 29.9
    barrier()
    stamp()
    def p_reads(i):
        out = []
        bb = bbuf(i)
        for ks2 in range(2):
            for nt in range(2):
                off = X_BASE + ((2 * i + ks2) * 2 + nt) * 1024
                out.append(f"ds_read_b128 {A(bb + (ks2 * 2 + nt) * 4, 4)}, {V(vLin)} offset:{off}")
        return out
    for x in p_reads(0):
        E(x)
    for i in range(16):
        u = ("v", i)
        eng.pos = 30 + i
        eng.force(u)
        bb = bbuf(i)
        mf = []
        for ks in range(2):
            for mt in range(2):
                for nt in range(2):
                    acc = V(ACC + (mt * 2 + nt) * 16, 16)
                    c = "0" if (i == 0 and ks == 0) else acc
                    mf.append(f"{M32} {acc}, {eng.reg(u, (ks * 2 + mt) * 4, 4)}, {A(bb + (ks * 2 + nt) * 4, 4)}, {c}")
        eng.pos = 30 + i + 0.4
        mfma_step(mf, p_reads(i + 1) if i + 1 < 16 else [])
        eng.release(u)
    eng.pos = 45.6
    stamp()
    eng.urgent = True
    cvt_inplace()
    eng.urgent = False
    barrier()
    E(f"ds_write_b32 {V(vSTw)}, {V(sm[0])} offset:{SUMS}")
    for mt in range(2):
        for nt in range(2):
            for tt in range(2):
                b = ACC + (mt * 2 + nt) * 16 + 8 * tt
                E(f"ds_write_b128 {V(vOW if mt == 0 else vOW2)}, {V(b, 4)} offset:{X_BASE + nt * 2048 + tt * 512}")
    eng.urgent = True
    for _ in range(4):
        eng.tick()
    eng.urgent = False
    barrier()
    stamp()
    def o_reads(s):
        return [f"ds_read_b128 {A(bbuf(s) + u * 4, 4)}, {V(vLin)} offset:{X_BASE + (s * 4 + u) * 1024}" for u in range(4)]
    for x in o_reads(0):
        E(x)
    for u4 in range(4):
        E(f"ds_read_b128 {V(vT + u4 * 4, 4)}, {V(vSMr)} offset:{SUMS + u4 * 256}")
    fl = (" " + args.stsc.replace("_", " ")) if args.stsc else ""
    def store_tile(m, up):
        out = []
        a0 = ACC + (m * 4 + 2 * up) * 4
        for h in range(2):
            rinv = V(vT + (2 * up + h) * 4)
            for k in range(4):
                out.append(f"v_mul_f32 {V(a0 + 4 * h + k)}, {V(a0 + 4 * h + k)}, {rinv}")
        for k in range(4):
            out.append(f"v_cvt_pk_bf16_f32 {V(a0 + k)}, {V(a0 + 2 * k)}, {V(a0 + 2 * k + 1)}")
        j = m * 2 + up
        out.append(f"buffer_store_dwordx4 {V(a0, 4)}, {V(vOut)}, {S(SRD_P, 4)}, {S(sST + j // 4)} offen offset:{(j % 4) * 1024}{fl}")
        return out
    for s in range(8):
        u = ("wo", s)
        eng.pos = 46 + s
        eng.force(u)
        bb = bbuf(s)
        mf = []
        for m in range(7):
            for u4 in range(4):
                acc = V(ACC + (m * 4 + u4) * 4, 4)
                c = "0" if s == 0 else acc
                mf.append(f"{M16} {acc}, {eng.reg(u, m * 4, 4)}, {A(bb + u4 * 4, 4)}, {c}")
        eng.pos = 46 + s + 0.4
        if s < 7:
            extra = o_reads(s + 1)
            if s == 0:
                for u4 in range(4):
                    b = vT + u4 * 4
                    extra += [f"v_add_f32 {V(b)}, {V(b)}, {V(b + 1)}", f"v_add_f32 {V(b + 2)}, {V(b + 2)}, {V(b + 3)}",
                              f"v_add_f32 {V(b)}, {V(b)}, {V(b + 2)}", f"v_rcp_f32 {V(b)}, {V(b)}"]
            for k, m in enumerate(mf):
                E(m)
                eng.urgent = k >= args.urg16
                if k >= 2 and extra and k % 2 == 0:
                    E(extra.pop(0))
                    eng.tick(args.b16 - 1)
                else:
                    eng.tick(args.b16)
            eng.urgent = False
            for x in extra:
                E(x)
        else:
            pend = []
            for k, mm in enumerate(mf):
                E(mm)
                m, u4 = k // 4, k % 4
                if u4 == 0 and m >= 2:
                    pend += store_tile(m - 2, 0) + store_tile(m - 2, 1)
                for _ in range(7):
                    if pend:
                        E(pend.pop(0))
            for x in pend:
                E(x)
            stamp()
            for m in (5, 6):
                for up in range(2):
                    for x in store_tile(m, up):
                        E(x)
        eng.release(u)
    if args.fused:
        if args.stamps:
            g.wait_vm()
            stamp()
        fused_tail()
    if args.stamps:
        g.wait_vm()
        stamp()
        n = stamp_n[0]
        E(f"v_mov_b32 {V(vT)}, 0")
        E(f"v_accvgpr_read_b32 {V(vT + 3)}, {A(STAMP_A)}")
        for k in range(n):
            E(f"v_accvgpr_read_b32 {V(vT + 1)}, {A(STAMP_A + k)}")
            E(f"v_sub_u32 {V(vT + 1)}, {V(vT + 1)}, {V(vT + 3)}")
            E(f"v_cmp_eq_u32 vcc, {k}, {V(vL)}")
            E(f"v_cndmask_b32 {V(vT)}, {V(vT)}, {V(vT + 1)}, vcc")
        E(f"v_lshlrev_b32 {V(vT + 2)}, 2, v0")
        E(f"buffer_store_dword {V(vT)}, {V(vT + 2)}, {S(SRD_D, 4)}, 0 offen")
    if args.dbgtime:
        g.wait_vm()
        g.raw("s_memtime s[88:89]")
        g.raw("s_memrealtime s[90:91]")
        g.raw("s_waitcnt lgkmcnt(0)")
        E("s_mul_hi_u32 s80, s2, 50529028")
        E("s_mul_i32 s81, s80, 85")
        E("s_cmp_eq_u32 s81, s2")
        g.raw("s_cbranch_scc0 K1_END")
        E("s_sub_u32 s88, s88, s96")
        E(f"v_mov_b32 {V(vT)}, s88")
        E(f"v_mov_b32 {V(vT + 1)}, s98")
        E(f"v_mov_b32 {V(vT + 2)}, s90")
        E(f"v_mov_b32 {V(vT + 3)}, s2")
        E("s_lshl_b32 s80, s80, 4")
        E(f"s_add_u32 s80, s80, {100 << 20}")
        E(f"v_mov_b32 {V(vT + 4)}, s80")
        E("v_cmp_eq_u32 vcc, 0, v0")
        g.raw("s_nop 4")
        g.raw("s_and_saveexec_b64 s[82:83], vcc")
        g.raw("s_cbranch_execz K1_END")
        E(f"global_store_dwordx4 {V(vT + 4)}, {V(vT, 4)}, {S(sPTR + 24, 2)}")
    g.raw("K1_END:")
    g.raw("s_endpgm")


def k2():
    h = Gen()
    e = h.emit
    h.raw("s_cmp_ge_u32 s2, 896")
    h.raw("s_cbranch_scc1 K2_END")
    h.raw("s_load_dwordx2 s[4:5], s[0:1], 80")
    h.raw("s_load_dwordx2 s[6:7], s[0:1], 96")
    if args.dbgtime:
        h.raw("s_load_dwordx2 s[40:41], s[0:1], 88")
        h.raw("s_memrealtime s[42:43]")
    e("s_mul_hi_u32 s3, s2, 0x4924925")
    e("s_mul_i32 s8, s3, 56")
    e("s_sub_u32 s8, s2, s8")
    e("v_lshlrev_b32 v2, 4, v0")
    e("s_lshl_b32 s9, s8, 10")
    e("v_add_u32 v2, s9, v2")
    e(f"s_mul_i32 s12, s3, {16 * PART_BYTES}")
    for hh in range(16):
        e(f"s_mov_b32 s{24 + hh}, {hh * PART_BYTES}")
    e(f"s_mov_b32 s18, {16 * PART_BYTES}")
    e("s_mov_b32 s19, 0x00020000")
    h.raw("s_waitcnt lgkmcnt(0)")
    e("s_add_u32 s16, s6, s12")
    e("s_addc_u32 s17, s7, 0")
    e("s_and_b32 s17, s17, 0xffff")
    for hh in range(16):
        e(f"buffer_load_dwordx4 {V(16 + hh * 4, 4)}, v2, s[16:19], s{24 + hh} offen")
    e("s_mul_i32 s9, s8, 4682")
    e("s_lshr_b32 s9, s9, 16")
    e("s_mul_i32 s13, s9, 14")
    e("s_sub_u32 s13, s8, s13")
    e("s_lshr_b32 s14, s13, 1")
    e("s_and_b32 s13, s13, 1")
    e("s_and_b32 s10, s3, 7")
    e("s_lshr_b32 s11, s3, 3")
    e("s_mul_i32 s10, s10, 114688")
    e("s_mul_i32 s11, s11, 896")
    e("s_add_u32 s10, s10, s11")
    e("s_mul_i32 s11, s13, 57344")
    e("s_add_u32 s10, s10, s11")
    e("s_mul_i32 s11, s9, 224")
    e("s_add_u32 s10, s10, s11")
    e("s_lshl_b32 s11, s14, 5")
    e("s_add_u32 s10, s10, s11")
    e("v_and_b32 v3, 15, v0")
    e("v_lshrrev_b32 v4, 4, v0")
    e("v_mul_u32_u24 v3, 1792, v3")
    e("v_lshl_add_u32 v3, v4, 3, v3")
    e("v_add_u32 v3, s10, v3")
    e("s_mov_b32 s15, 28672")
    e("s_mov_b32 s20, s4")
    e("s_and_b32 s21, s5, 0xffff")
    e(f"s_mov_b32 s22, {8 * 64 * 896 * 2}")
    e("s_mov_b32 s23, 0x00020000")
    for hh in range(16):
        for k in range(4):
            src = 16 + hh * 4 + k
            if hh == 0:
                e(f"v_lshlrev_b32 {V(8 + 2 * k)}, 16, {V(src)}")
                e(f"v_and_b32 {V(9 + 2 * k)}, 0xffff0000, {V(src)}")
            else:
                e(f"v_lshlrev_b32 {V(4 + (k % 2) * 2)}, 16, {V(src)}")
                e(f"v_and_b32 {V(5 + (k % 2) * 2)}, 0xffff0000, {V(src)}")
                e(f"v_pk_add_f32 {V(8 + 2 * k, 2)}, {V(8 + 2 * k, 2)}, {V(4 + (k % 2) * 2, 2)}")
    for k in range(4):
        e(f"v_cvt_pk_bf16_f32 {V(4 + k)}, {V(8 + 2 * k)}, {V(9 + 2 * k)}")
    nv = 80
    e("buffer_store_dwordx2 v[4:5], v3, s[20:23], 0 offen")
    e("buffer_store_dwordx2 v[6:7], v3, s[20:23], s15 offen")
    if args.dbgtime:
        h.wait_vm()
        h.raw("s_memrealtime s[44:45]")
        h.raw("s_waitcnt lgkmcnt(0)")
        e("s_cmp_eq_u32 s2, 895")
        h.raw("s_cbranch_scc0 K2_END")
        e("v_lshlrev_b32 v1, 2, v0")
        e(f"v_add_u32 v2, {100 << 20}, v1")
        e("v_cmp_gt_u32 vcc, 16, v0")
        h.raw("s_nop 4")
        h.raw("s_and_saveexec_b64 s[46:47], vcc")
        h.raw("s_cbranch_execz K2_END")
        e("global_load_dword v3, v2, s[6:7]")
        e("v_mov_b32 v4, s42")
        e("v_cmp_eq_u32 vcc, 3, v0")
        e("v_cndmask_b32 v3, v3, v4, vcc")
        e("v_mov_b32 v4, s44")
        e("v_cmp_eq_u32 vcc, 7, v0")
        e("v_cndmask_b32 v3, v3, v4, vcc")
        e("global_store_dword v1, v3, s[40:41]")
    h.raw("K2_END:")
    h.raw("s_endpgm")
    return h.finish(), nv


k1()
body1 = g.finish()
nins = sum(1 for l in body1.splitlines() if l.strip() and not l.strip().startswith(';') and not l.strip().endswith(':'))
body2, nv2 = k2()

desc = lambda name, nv, acc, ns: f""".p2align 6
.amdhsa_kernel {name}
  .amdhsa_next_free_vgpr {nv}
  .amdhsa_next_free_sgpr {ns}
  .amdhsa_accum_offset {acc}
  .amdhsa_group_segment_fixed_size 0
  .amdhsa_kernarg_size 104
  .amdhsa_user_sgpr_count 2
  .amdhsa_user_sgpr_kernarg_segment_ptr 1
  .amdhsa_system_sgpr_workgroup_id_x 1
.end_amdhsa_kernel
"""
K1 = NAME + "_kernel"
K2 = "reduce_partials_kernel"
txt = HEADER
if args.fused:
    txt += f"; @launch grid=(256,1,1) block=(256,1,1) lds={LDS_BYTES}\n"
else:
    txt += f"; @launch kernel={K1} grid=(256,1,1) block=(256,1,1) lds={LDS_BYTES}\n"
    if not args.nok2:
        txt += f"; @launch kernel={K2} grid=(896,1,1) block=(64,1,1) lds=0\n"
k2txt = "" if args.fused else f""".globl {K2}
.p2align 8
.type {K2},@function
{K2}:
{body2}"""
k2desc = "" if args.fused else desc(K2, nv2, (nv2 + 3) // 4 * 4, 48)
txt += f""".amdgcn_target "amdgcn-amd-amdhsa--gfx950"
.text
.globl {K1}
.p2align 8
.type {K1},@function
{K1}:
{body1}
{k2txt}
CODE_END:
.fill 64, 4, 0xbf800000
.section .rodata,"a"
{desc(K1, 512, 256, 102)}
{k2desc}
"""
open(args.o, "w").write(txt)
print(f"wrote {args.o}: k1 {nins} instrs, est {now[0]:.0f} cycles")
```

```python
import sys, math, argparse, struct
from asmgen import Gen, V, A, S, R

NAME = "concat_heads__gqa_block_cached__gqa_block_cached__near_ridge"
HEADER = open("cdna_kernels/" + NAME + ".s.ref").read().split("; Override launch")[0]

ap = argparse.ArgumentParser()
ap.add_argument("-o", default="k.s")
ap.add_argument("--stamps", action="store_true")
ap.add_argument("--dbgtime", action="store_true")
ap.add_argument("--nok2", action="store_true")
ap.add_argument("--kvfl", default="nt")
ap.add_argument("--vfl", default=None)
ap.add_argument("--stsc", default="sc1")
ap.add_argument("--nopf", action="store_true")
ap.add_argument("--rot", type=int, default=1)
ap.add_argument("--latw", type=int, default=1500)
ap.add_argument("--latk", type=int, default=2000)
ap.add_argument("--dgap", type=int, default=20)
ap.add_argument("--pacew", type=int, default=200)
ap.add_argument("--pacek", type=int, default=580)
ap.add_argument("--kvrot", type=int, default=0)
ap.add_argument("--stper", type=int, default=5)
ap.add_argument("--xrot", type=int, default=1)
ap.add_argument("--wowarm", type=int, default=0)
ap.add_argument("--smov", type=int, default=1)
ap.add_argument("--urg32", type=int, default=5)
ap.add_argument("--urg16", type=int, default=14)
ap.add_argument("--rdtick", type=int, default=4)
ap.add_argument("--b32", type=int, default=4)
ap.add_argument("--b16", type=int, default=2)
ap.add_argument("--xper", type=int, default=3)
ap.add_argument("--init", type=int, default=3, help="units DMA'd before waiting for x")
ap.add_argument("--kearly", type=int, default=3, help="interleave K units into the wq stream starting after this many wq units (0=off)")
ap.add_argument("--kratio", type=int, default=3)
ap.add_argument("--woearly", type=int, default=16)
ap.add_argument("--woratio", type=int, default=1)
ap.add_argument("--noabsorb", action="store_true")
ap.add_argument("--verbose", action="store_true")
ap.add_argument("--fused", type=int, default=0)
ap.add_argument("--maxpoll", type=int, default=400)
ap.add_argument("--sleep", type=int, default=2)
ap.add_argument("--nomfma", action="store_true")
ap.add_argument("--novalu", action="store_true")
ap.add_argument("--skip", default="", help="timing experiments: comma list of streams whose DMAs are dropped")
args = ap.parse_args()

PART_BYTES = 64 * 448 * 2

X_BASE = 0
STATS = 57344
SUMS = 32768
RING0 = 65536
NSLOT = 6
RING_W = NSLOT * 4096
LDS_BYTES = RING0 + 4 * RING_W
assert LDS_BYTES <= 163840

sW, sRING, sOFF, sC = 4, 5, 6, 7
SRD_X, SRD_WQ, SRD_K, SRD_V, SRD_WO, SRD_P = 8, 12, 16, 20, 24, 28
sB, sH, sBR, sKV = 32, 33, 34, 35
sPTR = 36
sPC = 62
sT0, sT1, sT2, sT3 = 64, 65, 66, 67
sST = 68
SRD_D = 72
sTM = 76
sROT8 = 78
sRK = 79
sRV = 87
sRQ = 80
sRO = 88

vL = 1
vXD = 2
vWD = 4
vKD = 8
vVD = 12
vOD = 16
vRBx = 20
vRBk = 24
vTRw = 28
vTRv = 30
vTRo = 32
vLin = 39
vQW = 40
vPW = 41
vOW = 42
vSTw = 43
vSTr = 44
vOW2 = 45
vSMr = 46
vOut = 47
vT = 48
ACC = 128
BBUF = 128
QREG = 0
STAMP_A = 240

g = Gen()
now = [0.0]
shadow = [0.0]


def cost_of(text):
    op = text.split()[0]
    if op.startswith("v_mfma"):
        return None
    if op in ("v_exp_f32", "v_rcp_f32"):
        return 8
    if op.startswith("v_") or op.startswith("s_"):
        return 4
    if op.startswith("ds_write"):
        return 16
    if op.startswith("ds_"):
        return 6
    return 12


def E(text, tag=None):
    drop = (args.nomfma and text.startswith("v_mfma")) or (args.novalu and text.split()[0] in ("v_exp_f32", "v_fma_f32", "v_max3_f32", "v_pk_add_f32"))
    if tag and isinstance(tag, tuple) and tag[0] == "G" and tag[1][0] in args.skip.split(","):
        drop = True
    if not drop:
        g.emit(text, tag)
    c = cost_of(text)
    if c is None:
        m = 32 if "32x32" in text else 16
        now[0] += max(shadow[0], 0) + 8
        shadow[0] = m - 8
    else:
        use = min(c, max(shadow[0], 0))
        shadow[0] -= use
        now[0] += c


def f32bits(x):
    return struct.unpack("<I", struct.pack("<f", x))[0]


stamp_n = [0]
def stamp():
    if not args.stamps:
        return
    k = stamp_n[0]; stamp_n[0] += 1
    assert k < 13
    g.raw(f"s_memtime {S(sTM, 2)}")
    g.raw("s_waitcnt lgkmcnt(0)")
    g.lg = []
    E(f"v_accvgpr_write_b32 {A(STAMP_A + k)}, {S(sTM)}")


def srd(base, ptr, off_sreg, nrec):
    E(f"s_add_u32 {S(base)}, {S(ptr)}, {S(off_sreg)}")
    E(f"s_addc_u32 {S(base + 1)}, {S(ptr + 1)}, 0")
    E(f"s_and_b32 {S(base + 1)}, {S(base + 1)}, 0xffff")
    if isinstance(nrec, int):
        E(f"s_mov_b32 {S(base + 2)}, {nrec}")
    else:
        E(f"s_sub_u32 {S(base + 2)}, {nrec[0]}, {S(nrec[1])}")
    E(f"s_mov_b32 {S(base + 3)}, 0x00020000")


t = [vT + 4 + i for i in range(10)]
l3, l7, l4 = t[0], t[1], t[2]


def prologue_a():
    g.raw("s_cmp_ge_u32 s2, 256")
    g.raw("s_cbranch_scc1 K1_END")
    if args.dbgtime:
        g.raw("s_memtime s[96:97]")
        g.raw("s_memrealtime s[98:99]")
    stamp()
    g.raw(f"s_load_dwordx16 {S(sPTR, 16)}, s[0:1], 0")
    g.raw(f"s_load_dwordx8 {S(sPTR + 16, 8)}, s[0:1], 64")
    g.raw(f"s_load_dwordx2 {S(sPTR + 24, 2)}, s[0:1], 96")
    if not args.nopf:
        E(f"s_getpc_b64 {S(sPC, 2)}")
        g.raw("K1_PC:")
        E(f"v_lshlrev_b32 {V(vT)}, 7, v0")
        E(f"v_min_u32 {V(vT + 2)}, CODE_END-K1_PC-4, {V(vT)}")
        E(f"global_load_dword {A(254)}, {V(vT + 2)}, {S(sPC, 2)}", tag="pf")
        E(f"v_add_u32 {V(vT)}, 0x8000, {V(vT)}")
        E(f"v_min_u32 {V(vT + 2)}, CODE_END-K1_PC-4, {V(vT)}")
        E(f"global_load_dword {A(253)}, {V(vT + 2)}, {S(sPC, 2)}", tag="pf")
    E(f"v_and_b32 {V(vL)}, 63, v0")
    E(f"v_lshrrev_b32 {V(vT + 3)}, 6, v0")
    E(f"v_readfirstlane_b32 {S(sW)}, {V(vT + 3)}")
    E(f"s_and_b32 {S(sT0)}, s2, 7")
    E(f"s_lshr_b32 {S(sT1)}, s2, 3")
    E(f"s_lshr_b32 {S(sT2)}, {S(sT1)}, 4")
    E(f"s_lshl_b32 {S(sT0)}, {S(sT0)}, 1")
    E(f"s_add_u32 {S(sT0)}, {S(sT0)}, {S(sT2)}")
    E(f"s_lshr_b32 {S(sBR)}, {S(sT0)}, 3")
    E(f"s_and_b32 {S(sKV)}, {S(sT0)}, 7")
    E(f"s_lshr_b32 {S(sB)}, {S(sT1)}, 1")
    E(f"s_and_b32 {S(sB)}, {S(sB)}, 7")
    E(f"s_and_b32 {S(sT2)}, {S(sT1)}, 1")
    E(f"s_lshl_b32 {S(sH)}, {S(sKV)}, 1")
    E(f"s_add_u32 {S(sH)}, {S(sH)}, {S(sT2)}")
    E(f"s_mul_i32 {S(sRING)}, {S(sW)}, {RING_W}")
    E(f"s_add_u32 {S(sRING)}, {S(sRING)}, {RING0}")
    if args.kvrot:
        E(f"s_mul_i32 {S(sRV)}, {S(sB)}, {args.kvrot}")
        E(f"s_add_u32 {S(sRV)}, {S(sRV)}, {S(sT0)}")
        E(f"s_lshl_b32 {S(sRK)}, {S(sW)}, 2")
        E(f"s_add_u32 {S(sRK)}, {S(sRK)}, {S(sRV)}")
    if args.rot:
        E(f"s_cmp_eq_u32 {S(sB)}, 7")
        E(f"s_cselect_b32 {S(sT0)}, 3, {S(sB)}")
    else:
        E(f"s_mov_b32 {S(sT0)}, 0")
    for i in range(7):
        E(f"s_add_u32 {S(sT1)}, {S(sT0)}, {i}")
        E(f"s_sub_u32 {S(sT2)}, {S(sT1)}, 7")
        E(f"s_cmp_ge_u32 {S(sT1)}, 7")
        E(f"s_cselect_b32 {S(sT1)}, {S(sT2)}, {S(sT1)}")
        E(f"s_lshl_b32 {S(sRQ + i)}, {S(sT1)}, 19")
    l = V(vL)
    E(f"v_lshrrev_b32 {V(l3)}, 3, {l}")
    E(f"v_and_b32 {V(l7)}, 7, {l}")
    E(f"v_lshrrev_b32 {V(l4)}, 4, {l}")
    E(f"s_lshl_b32 {S(sT3)}, {S(sW)}, 7")
    E(f"s_mul_i32 {S(sT0)}, {S(sW)}, {16 * 896}")
    E(f"v_mul_u32_u24 {V(t[4])}, 896, {V(l3)}")
    E(f"v_add_u32 {V(t[4])}, {S(sT0)}, {V(t[4])}")
    E(f"v_xor_b32 {V(t[5])}, {V(l7)}, {V(l4)}")
    E(f"v_lshl_add_u32 {V(vXD)}, {V(t[5])}, 4, {V(t[4])}")
    E(f"v_xor_b32 {V(t[6])}, 4, {V(t[5])}")
    E(f"v_lshl_add_u32 {V(vXD + 1)}, {V(t[6])}, 4, {V(t[4])}")
    E(f"v_add_u32 {V(vXD + 1)}, {8 * 896}, {V(vXD + 1)}")
    if args.kvrot:
        E(f"v_lshlrev_b32 {V(t[4])}, 9, {V(l3)}")
    else:
        E(f"s_lshl_b32 {S(sT0)}, {S(sW)}, 16")
        E(f"v_lshl_add_u32 {V(t[4])}, {V(l3)}, 9, {S(sT0)}")
    for j in range(4):
        E(f"v_lshl_add_u32 {V(vKD + j)}, {V(t[5] if j % 2 == 0 else t[6])}, 4, {V(t[4])}")
        if j:
            E(f"v_add_u32 {V(vKD + j)}, {j * 3072}, {V(vKD + j)}")
    E(f"v_and_b32 {V(t[7])}, 1, {V(l4)}")
    E(f"v_lshlrev_b32 {V(t[7])}, 2, {V(t[7])}")
    E(f"v_xor_b32 {V(t[7])}, {V(l7)}, {V(t[7])}")
    E(f"v_lshl_add_u32 {V(t[7])}, {V(t[7])}, 4, {S(sT3)}")
    E(f"v_lshl_add_u32 {V(vWD)}, {V(l3)}, 13, {V(t[7])}")
    E(f"v_lshl_add_u32 {V(vVD)}, {V(l3)}, 9, {V(t[7])}")
    for j in range(1, 4):
        E(f"v_add_u32 {V(vWD + j)}, {j * (65536 - 1024)}, {V(vWD)}")
        E(f"v_add_u32 {V(vVD + j)}, {j * 3072}, {V(vVD)}")
    g.raw("s_waitcnt lgkmcnt(0)")
    E(f"s_cmp_eq_u32 {S(sBR)}, 0")
    for i in range(0, 10, 2):
        E(f"s_cselect_b64 {S(sPTR + i, 2)}, {S(sPTR + i, 2)}, {S(sPTR + 10 + i, 2)}")
    E(f"s_mul_i32 {S(sT0)}, {S(sB)}, 57344")
    srd(SRD_X, sPTR + 0, sT0, 57344)
    E(f"s_lshl_b32 {S(sT0)}, {S(sH)}, 9")
    srd(SRD_WQ, sPTR + 6, sT0, (448 * 8192, sT0))
    E(f"s_lshl_b32 {S(sT0)}, {S(sB)}, 3")
    E(f"s_add_u32 {S(sT0)}, {S(sT0)}, {S(sKV)}")
    E(f"s_lshl_b32 {S(sT0)}, {S(sT0)}, 18")
    srd(SRD_K, sPTR + 2, sT0, 262144)
    srd(SRD_V, sPTR + 4, sT0, 262144)


def prologue_b():
    l = V(vL)
    E(f"s_mov_b32 {S(sC)}, 0x{f32bits(math.log2(math.e) / 16.0):08x}")
    E(f"s_mul_i32 {S(sT0)}, {S(sH)}, 229376")
    srd(SRD_WO, sPTR + 8, sT0, 229376)
    E(f"s_lshl_b32 {S(sT0)}, {S(sBR)}, 3")
    E(f"s_add_u32 {S(sT0)}, {S(sT0)}, {S(sB)}")
    E(f"s_lshl_b32 {S(sT0)}, {S(sT0)}, 4")
    E(f"s_add_u32 {S(sT0)}, {S(sT0)}, {S(sH)}")
    E(f"s_mul_i32 {S(sT1)}, {S(sT0)}, {PART_BYTES}")
    srd(SRD_P, sPTR + 24, sT1, PART_BYTES)
    if args.stamps:
        E(f"s_lshl_b32 {S(sT1)}, {S(sT0)}, 16")
        E(f"s_add_u32 {S(sT1)}, {S(sT1)}, {64 << 20}")
        srd(SRD_D, sPTR + 24, sT1, 65536)
    for u in range(4):
        E(f"s_mov_b32 {S(sST + u)}, {u * 4096}")
    E(f"s_mov_b32 {S(sROT8)}, {S(sB)}" if args.rot else f"s_mov_b32 {S(sROT8)}, 0")
    for i in range(8):
        E(f"s_add_u32 {S(sT1)}, {S(sROT8)}, {i}")
        E(f"s_and_b32 {S(sT1)}, {S(sT1)}, 7")
        E(f"s_mul_i32 {S(sRO + i)}, {S(sT1)}, 28672")
    E(f"v_bfe_u32 {V(t[4])}, {l}, 1, 3")
    E(f"v_xor_b32 {V(t[4])}, {V(t[4])}, {V(l4)}")
    E(f"v_xor_b32 {V(t[5])}, 4, {V(t[4])}")
    E(f"v_min_u32 {V(t[4])}, 6, {V(t[4])}")
    E(f"v_min_u32 {V(t[5])}, 6, {V(t[5])}")
    E(f"v_and_b32 {V(t[6])}, 1, {l}")
    E(f"v_lshlrev_b32 {V(t[6])}, 4, {V(t[6])}")
    E(f"v_mul_u32_u24 {V(t[7])}, 896, {V(l4)}")
    E(f"s_mul_i32 {S(sT0)}, {S(sW)}, 224")
    E(f"v_add3_u32 {V(t[6])}, {V(t[6])}, {V(t[7])}, {S(sT0)}")
    for j in range(4):
        E(f"v_lshl_add_u32 {V(vOD + j)}, {V(t[4] if j < 2 else t[5])}, 5, {V(t[6])}")
        if j:
            E(f"v_add_u32 {V(vOD + j)}, {j * (3584 - 1024)}, {V(vOD + j)}")
    n, hf = t[4], t[5]
    E(f"v_and_b32 {V(n)}, 31, {l}")
    E(f"v_lshrrev_b32 {V(hf)}, 5, {l}")
    E(f"v_lshrrev_b32 {V(t[6])}, 3, {V(n)}")
    E(f"v_lshlrev_b32 {V(t[6])}, 10, {V(t[6])}")
    E(f"v_lshl_add_u32 {V(t[6])}, {V(l7)}, 7, {V(t[6])}")
    E(f"v_bfe_u32 {V(t[7])}, {V(n)}, 1, 3")
    E(f"v_xor_b32 {V(t[7])}, {V(t[7])}, {V(hf)}")
    for i in range(4):
        E(f"v_xor_b32 {V(t[8])}, {2 * i}, {V(t[7])}")
        E(f"v_lshl_add_u32 {V(vRBx + i)}, {V(t[8])}, 4, {V(t[6])}")
        E(f"v_add_u32 {V(vRBk + i)}, {S(sRING)}, {V(vRBx + i)}")
    r, c = t[6], t[7]
    E(f"v_bfe_u32 {V(r)}, {l}, 2, 2")
    E(f"v_and_b32 {V(c)}, 3, {l}")
    E(f"v_lshlrev_b32 {V(t[8])}, 7, {V(r)}")
    E(f"v_lshrrev_b32 {V(t[9])}, 1, {V(r)}")
    E(f"v_lshl_add_u32 {V(t[8])}, {V(t[9])}, 6, {V(t[8])}")
    E(f"v_and_b32 {V(t[9])}, 1, {V(l4)}")
    E(f"v_lshl_add_u32 {V(t[8])}, {V(t[9])}, 5, {V(t[8])}")
    E(f"v_and_b32 {V(t[9])}, 1, {V(c)}")
    E(f"v_lshl_add_u32 {V(t[8])}, {V(t[9])}, 4, {V(t[8])}")
    E(f"v_lshrrev_b32 {V(t[9])}, 1, {V(c)}")
    E(f"v_lshl_add_u32 {V(t[8])}, {V(t[9])}, 3, {V(t[8])}")
    E(f"v_add_u32 {V(t[8])}, {S(sRING)}, {V(t[8])}")
    E(f"v_lshl_add_u32 {V(vTRw)}, {V(hf)}, 10, {V(t[8])}")
    E(f"v_xor_b32 {V(vTRw + 1)}, 64, {V(vTRw)}")
    E(f"v_lshl_add_u32 {V(vTRv)}, {V(hf)}, 9, {V(t[8])}")
    E(f"v_xor_b32 {V(vTRv + 1)}, 64, {V(vTRv)}")
    E(f"v_lshlrev_b32 {V(t[8])}, 11, {V(l4)}")
    E(f"v_lshl_add_u32 {V(t[8])}, {V(r)}, 8, {V(t[8])}")
    E(f"v_lshl_add_u32 {V(t[8])}, {V(c)}, 3, {V(t[8])}")
    E(f"v_add_u32 {V(t[8])}, {S(sRING)}, {V(t[8])}")
    E(f"v_and_b32 {V(t[9])}, 1, {V(l4)}")
    E(f"v_lshl_or_b32 {V(t[9])}, {V(t[9])}, 2, {V(r)}")
    E(f"v_lshl_add_u32 {V(vTRo)}, {V(t[9])}, 5, {V(t[8])}")
    for m in range(1, 7):
        E(f"v_xor_b32 {V(vTRo + m)}, {m * 32}, {V(vTRo)}")
    E(f"v_lshlrev_b32 {V(vLin)}, 4, {l}")
    E(f"s_lshl_b32 {S(sT0)}, {S(sW)}, 13")
    E(f"v_add_u32 {V(vQW)}, {S(sT0)}, {V(vLin)}")
    E(f"s_lshl_b32 {S(sT1)}, {S(sW)}, 14")
    E(f"v_add_u32 {V(vPW)}, {S(sT1)}, {V(vLin)}")
    E(f"v_lshrrev_b32 {V(t[8])}, 4, {V(n)}")
    E(f"v_lshlrev_b32 {V(t[8])}, 10, {V(t[8])}")
    E(f"v_lshl_add_u32 {V(t[8])}, {V(hf)}, 8, {V(t[8])}")
    E(f"v_and_b32 {V(t[9])}, 15, {l}")
    E(f"v_lshl_add_u32 {V(t[8])}, {V(t[9])}, 4, {V(t[8])}")
    for mt in range(2):
        E(f"s_lshl_b32 {S(sT1)}, {S(sW)}, 1")
        E(f"s_add_u32 {S(sT1)}, {S(sT1)}, {8 + mt}")
        E(f"s_sub_u32 {S(sT1)}, {S(sT1)}, {S(sROT8)}")
        E(f"s_and_b32 {S(sT1)}, {S(sT1)}, 7")
        E(f"s_lshl_b32 {S(sT1)}, {S(sT1)}, 12")
        E(f"v_add_u32 {V(vOW if mt == 0 else vOW2)}, {S(sT1)}, {V(t[8])}")
    E(f"s_lshl_b32 {S(sT0)}, {S(sW)}, 2")
    E(f"v_add_u32 {V(vSTw)}, {S(sT0)}, {V(vLin)}")
    E(f"v_lshlrev_b32 {V(vSTr)}, 4, {V(n)}")
    E(f"v_lshlrev_b32 {V(vSMr)}, 4, {V(t[9])}")
    E(f"s_mul_i32 {S(sT0)}, {S(sW)}, 14336")
    E(f"v_add_u32 {V(vOut)}, {S(sT0)}, {V(vLin)}")


def dma_x():
    E(f"s_lshl_b32 {S(sT0)}, {S(sW)}, 11")
    if not args.xrot:
        for cg in range(7):
            E(f"s_lshr_b32 {S(sOFF)}, {S(sRQ + cg)}, 12")
            for par in range(2):
                E(f"s_add_u32 m0, {S(sT0)}, {X_BASE + (cg * 8 + par) * 1024}")
                E(f"buffer_load_dwordx4 {V(vXD + par)}, {S(SRD_X, 4)}, {S(sOFF)} offen lds", tag="X")
        return
    E(f"s_mul_i32 {S(sT1)}, {S(sH)}, 37")
    E(f"s_lshr_b32 {S(sT1)}, {S(sT1)}, 8")
    E(f"s_mul_i32 {S(sT1)}, {S(sT1)}, 7")
    E(f"s_sub_u32 {S(sT1)}, {S(sH)}, {S(sT1)}")
    E(f"s_lshr_b32 {S(sT2)}, {S(sRQ)}, 19")
    E(f"s_add_u32 {S(sT2)}, {S(sT2)}, {S(sT1)}")
    E(f"s_sub_u32 {S(sT3)}, {S(sT2)}, 7")
    E(f"s_cmp_ge_u32 {S(sT2)}, 7")
    E(f"s_cselect_b32 {S(sT2)}, {S(sT3)}, {S(sT2)}")
    for i in range(7):
        E(f"s_lshl_b32 {S(sOFF)}, {S(sT2)}, 7")
        E(f"s_lshl_b32 {S(sT3)}, {S(sT1)}, 13")
        E(f"s_add_u32 m0, {S(sT3)}, {S(sT0)}")
        E(f"buffer_load_dwordx4 {V(vXD)}, {S(SRD_X, 4)}, {S(sOFF)} offen lds", tag="X")
        E(f"s_add_u32 m0, m0, 1024")
        if i < 6:
            E(f"s_add_u32 {S(sT1)}, {S(sT1)}, 1")
            E(f"s_cmp_eq_u32 {S(sT1)}, 7")
            E(f"s_cselect_b32 {S(sT1)}, 0, {S(sT1)}")
        E(f"buffer_load_dwordx4 {V(vXD + 1)}, {S(SRD_X, 4)}, {S(sOFF)} offen lds", tag="X")
        if i < 6:
            E(f"s_add_u32 {S(sT2)}, {S(sT2)}, 1")
            E(f"s_cmp_eq_u32 {S(sT2)}, 7")
            E(f"s_cselect_b32 {S(sT2)}, 0, {S(sT2)}")


def cons_pos(u):
    k, i = u
    return {"wq": 0, "k": 14, "v": 30, "wo": 46}[k] + i


INF = 1e9
chunks = []
for b in range(64, 128, 16):
    chunks.append(("v", b, [(0, INF)]))
for b in range(160, 240, 16):
    chunks.append(("a", b, [(0, INF)]))
for b in range(0, 128, 16):
    chunks.append(("a", b, [(0, 13.5), (29.6, INF)]))
for b in range(192, 240, 16):
    chunks.append(("v", b, [(0, 22), (29.9, 46)]))
chunks.append(("v", 240, [(0, 22), (29.9, INF)]))


class Engine:
    def __init__(self, order):
        self.order = order
        self.qd = 0; self.dsub = 0
        self.qr = 0; self.rsub = 0
        self.slot_owner = [None] * NSLOT
        self.slot_last = [None] * NSLOT
        self.slot = {}; self.tdma = {}; self.regs = {}; self.done = set()
        self.chunk_busy = [None] * len(chunks)
        self.last_dma = -INF
        self.pos = 0.0
        self.rlist = None
        self.land = {}
        self.setup_done = False
        self.urgent = False
        self.last_land = 3000

    def nblk(self, u): return 8 if u[0] == "wo" else 4

    def find_slots(self, u, force):
        need = 2 if u[0] == "wo" else 1
        best = None
        for s in range(0, NSLOT, need):
            if all(self.slot_owner[s + k] is None for k in range(need)):
                tl = max((self.slot_last[s + k][1] if self.slot_last[s + k] else -INF) for k in range(need))
                if not force and now[0] - tl < 100:
                    continue
                if best is None or tl < best[1]:
                    best = (s, tl)
        return None if best is None else best[0]

    def find_chunks(self, u):
        need = 2 if u[0] == "wo" else 1
        cp = cons_pos(u)
        cand = []
        for i, (k, b, wins) in enumerate(chunks):
            if self.chunk_busy[i] is not None:
                continue
            for (a, z) in wins:
                if a <= self.pos and cp < z:
                    cand.append((z, i))
                    break
        if len(cand) < need:
            return None
        cand.sort()
        return [i for _, i in cand[:need]]

    def dma_params(self, u, half):
        k, i = u
        nt = (" " + args.kvfl.replace("_", " ")) if args.kvfl else ""
        if k == "wq":
            return SRD_WQ, vWD, (sRQ + i // 2, (i % 2) * 262144), ""
        if k == "k":
            if args.kvrot:
                return SRD_K, vKD, ("rot", sRK, i // 4, (i % 4) * 128), nt
            return SRD_K, vKD, (i // 4) * 16384 + (i % 4) * 128, nt
        if k == "v":
            if args.vfl is not None:
                nt = (" " + args.vfl) if args.vfl else ""
            if args.kvrot:
                return SRD_V, vVD, ("rot", sRV, i, 0), nt
            return SRD_V, vVD, i * 16384, nt
        return SRD_WO, vOD, (sRO + i, half * 14336), ""

    def step_dma(self, force=False, split=False):
        if self.qd >= len(self.order):
            return 0
        if self.dsub == 0 and not self.setup_done:
            skipped = set()
            found = None
            for ci in range(self.qd, min(self.qd + 4, len(self.order))):
                u = self.order[ci]
                if u[0] in skipped:
                    continue
                s = self.find_slots(u, force)
                if s is not None:
                    found = (ci, s)
                    break
                skipped.add(u[0])
            if found is None:
                return 0
            ci, s = found
            self.order.insert(self.qd, self.order.pop(ci))
            u = self.order[self.qd]
            for k in range(self.nblk(u) // 4):
                if self.slot_last[s + k]:
                    g.wait_ds(("A", self.slot_last[s + k][0]))
                self.slot_owner[s + k] = u
            self.slot[u] = s
        u = self.order[self.qd]
        half, j = self.dsub // 4, self.dsub % 4
        srd_, vo, so, fl = self.dma_params(u, half)
        n = 0
        if j == 0 and not self.setup_done:
            E(f"s_add_u32 m0, {S(sRING)}, {(self.slot[u] + half) * 4096}")
            n = 2
            if isinstance(so, tuple) and so[0] == "rot":
                E(f"s_add_u32 {S(sOFF)}, {S(so[1])}, {so[2]}")
                E(f"s_and_b32 {S(sOFF)}, {S(sOFF)}, 15")
                E(f"s_lshl_b32 {S(sOFF)}, {S(sOFF)}, 14")
                n = 4
                if so[3]:
                    E(f"s_add_u32 {S(sOFF)}, {S(sOFF)}, {so[3]}")
                    n = 5
            elif isinstance(so, tuple):
                E(f"s_add_u32 {S(sOFF)}, {S(so[0])}, {so[1]}")
            else:
                E(f"s_mov_b32 {S(sOFF)}, {so}")
            if split:
                self.setup_done = True
                return n
        self.setup_done = False
        off = f" offset:{j * 1024}" if j else ""
        E(f"buffer_load_dwordx4 {V(vo + j)}, {S(srd_, 4)}, {S(sOFF)} offen{off}{fl} lds", tag=("G", u))
        self.last_dma = now[0]
        self.dsub += 1
        if self.dsub == self.nblk(u):
            self.tdma[u] = now[0]
            kv = u[0] in ("k", "v")
            lat = args.latk if kv else args.latw
            pace = (args.pacek if kv else args.pacew) * self.nblk(u) // 4
            self.land[u] = max(now[0] + lat, self.last_land + pace)
            self.last_land = self.land[u]
            self.dsub = 0
            self.qd += 1
        return n + 1

    def reg(self, u, idx, n):
        ch = self.regs[u][idx // 16]
        k, b, _ = chunks[ch]
        return R(k, b + idx % 16, n)

    def read_list(self, u):
        k, i = u
        so = self.slot[u] * 4096
        out = []
        if k in ("wq", "v"):
            base = vTRw if k == "wq" else vTRv
            for ks in range(2):
                for mt in range(2):
                    for r2 in range(2):
                        off = so + ks * 2048 + r2 * (512 if k == "wq" else 1024)
                        out.append(f"ds_read_b64_tr_b16 {self.reg(u, (ks * 2 + mt) * 4 + r2 * 2, 2)}, {V(base + mt)} offset:{off}")
        elif k == "k":
            for q in range(4):
                out.append(f"ds_read_b128 {self.reg(u, q * 4, 4)}, {V(vRBk + q)} offset:{so}")
        else:
            for m in range(7):
                for r2 in range(2):
                    out.append(f"ds_read_b64_tr_b16 {self.reg(u, m * 4 + r2 * 2, 2)}, {V(vTRo + m)} offset:{so + r2 * 1024}")
        return out

    def step_read(self, force=False, nmax=None):
        if self.qr >= len(self.order):
            return False
        u = self.order[self.qr]
        if u not in self.tdma:
            return False
        if self.rlist is None:
            if not force:
                urgent = self.urgent and any(cons_pos(x) <= self.pos + 1 for x in self.order[self.qr:self.qr + 3])
                if now[0] < self.land[u] and not urgent:
                    return False
                if args.noabsorb and cons_pos(u) > self.pos + 1.5:
                    return False
            ch = self.find_chunks(u)
            if ch is None:
                if force:
                    raise RuntimeError(f"no chunk for {u} at pos {self.pos}")
                return False
            for c in ch:
                self.chunk_busy[c] = u
            self.regs[u] = ch
            self.rlist = self.read_list(u)
            g.wait_vm(("G", u))
            if now[0] < self.land[u]:
                now[0] = self.land[u]; shadow[0] = 0
            if args.verbose:
                print(f"read {u} at t={now[0]:.0f} pos={self.pos} (dma t={self.tdma[u]:.0f}) {'FORCED' if force else ''}")
        n = args.rdtick if nmax is None else nmax
        for _ in range(n):
            if not self.rlist:
                break
            E(self.rlist.pop(0), tag=("A", u))
        if not self.rlist:
            self.rlist = None
            s = self.slot[u]
            for k in range(self.nblk(u) // 4):
                self.slot_owner[s + k] = None
                self.slot_last[s + k] = (u, now[0])
            self.done.add(u)
            self.qr += 1
        return True

    def tick(self, budget=4):
        used = 0
        if now[0] - self.last_dma >= args.dgap:
            used = self.step_dma(split=(budget < 3))
        if budget - used > 0:
            self.step_read(nmax=budget - used)

    def force(self, u):
        guard = 0
        while u not in self.done:
            guard += 1
            assert guard < 10000, "engine stuck"
            nxt = self.order[self.qr]
            if self.rlist is None and (nxt not in self.land or now[0] < self.land[nxt]):
                while self.step_dma(force=True):
                    pass
            if self.step_read(force=True, nmax=99):
                continue
            if not self.step_dma(force=True):
                raise RuntimeError("engine deadlock")

    def release(self, u):
        for c in self.regs[u]:
            self.chunk_busy[c] = None


def make_order():
    wq = [("wq", i) for i in range(14)]
    k = [("k", i) for i in range(16)]
    v = [("v", i) for i in range(16)]
    wo = [("wo", i) for i in range(8)]
    if args.kearly:
        o = wq[:args.kearly]
        rest = wq[args.kearly:]
        ki = 0
        for n, w in enumerate(rest):
            if n % args.kratio == 0:
                o.append(k[ki]); ki += 1
            o.append(w)
        o += k[ki:]
    else:
        o = wq + k
    if args.woearly < 16:
        o += v[:args.woearly]
        wi = 0
        for n, x in enumerate(v[args.woearly:]):
            if n % args.woratio == 0 and wi < 8:
                o.append(wo[wi]); wi += 1
            o.append(x)
        o += wo[wi:]
    else:
        o += v + wo
    return o


eng = Engine(make_order())


def C(text, tag=None):
    E(text, tag)
    eng.urgent = True
    eng.tick()
    eng.urgent = False


vcount = [0]
def CV(text):
    E(text)
    vcount[0] += 1
    if vcount[0] % 4 == 0:
        eng.tick(3)


def barrier():
    g.barrier()
    now[0] += 60


M32 = "v_mfma_f32_32x32x16_bf16"
M16 = "v_mfma_f32_16x16x32_bf16"


def bbuf(i):
    return BBUF + (i % 2) * 16


def mfma_step(mf, breads, extra=None):
    for k, m in enumerate(mf):
        E(m)
        eng.urgent = k >= args.urg32
        used = 0
        if k >= 1 and breads:
            for _ in range(2):
                if breads:
                    E(breads.pop(0)); used += 1
        if extra:
            for _ in range(args.xper):
                if extra:
                    E(extra.pop(0)); used += 1
        eng.tick(max(args.b32 - used, 1))
    eng.urgent = False
    for b in breads:
        E(b)


def fused_tail():
    r = g.raw
    sGRP, sOLD, sIT, sEXTRA, sCUR, sSKIP = 80, 81, 82, 83, 84, 85
    SRD_G, SRD_O = 8, 12
    g.wait_vm(); g.wait_ds()
    r("s_barrier")
    stamp()
    E(f"s_lshl_b32 {S(sGRP)}, {S(sBR)}, 3")
    E(f"s_add_u32 {S(sGRP)}, {S(sGRP)}, {S(sB)}")
    r(f"s_cmp_lg_u32 {S(sW)}, 0")
    r("s_cbranch_scc1 L_WAIT")
    E(f"s_lshl_b32 {S(sT0)}, {S(sGRP)}, 4")
    E(f"v_mov_b32 {V(vT)}, {S(sT0)}")
    E(f"v_mov_b32 {V(vT + 1)}, 1")
    E(f"s_mov_b32 {S(sEXTRA)}, 0")
    E(f"s_mov_b32 {S(sSKIP)}, 0")
    r("s_mov_b64 exec, 1")
    r(f"global_atomic_add {V(vT + 2)}, {V(vT)}, {V(vT + 1)}, {S(sPTR + 22, 2)} sc0")
    r("s_waitcnt vmcnt(0)")
    r(f"v_readfirstlane_b32 {S(sOLD)}, {V(vT + 2)}")
    r("s_nop 3")
    r(f"s_and_b32 {S(sT0)}, {S(sOLD)}, 0xff")
    r(f"s_cmp_eq_u32 {S(sT0)}, 15")
    r("s_cbranch_scc0 L_POLL0")
    r(f"s_bfe_u32 {S(sEXTRA)}, {S(sOLD)}, 0x100008")
    r("s_branch L_GO")
    r("L_POLL0:")
    r(f"s_mov_b32 {S(sIT)}, 0")
    r("L_POLL:")
    r(f"s_sleep {args.sleep}")
    r(f"global_load_dword {V(vT + 2)}, {V(vT)}, {S(sPTR + 22, 2)} sc1")
    r("s_waitcnt vmcnt(0)")
    r(f"v_readfirstlane_b32 {S(sOLD)}, {V(vT + 2)}")
    r("s_nop 3")
    r(f"s_and_b32 {S(sT0)}, {S(sOLD)}, 0xff")
    r(f"s_cmp_eq_u32 {S(sT0)}, 16")
    r("s_cbranch_scc1 L_GO")
    r(f"s_add_u32 {S(sIT)}, {S(sIT)}, 1")
    r(f"s_cmp_lt_u32 {S(sIT)}, {args.maxpoll}")
    r("s_cbranch_scc1 L_POLL")
    r(f"s_add_u32 {S(sT0)}, {S(sH)}, 8")
    r(f"s_lshl_b32 {S(sT0)}, 1, {S(sT0)}")
    r(f"v_mov_b32 {V(vT + 1)}, {S(sT0)}")
    r(f"global_atomic_add {V(vT + 2)}, {V(vT)}, {V(vT + 1)}, {S(sPTR + 22, 2)} sc0")
    r("s_waitcnt vmcnt(0)")
    r(f"v_readfirstlane_b32 {S(sOLD)}, {V(vT + 2)}")
    r("s_nop 3")
    r(f"s_and_b32 {S(sT0)}, {S(sOLD)}, 0xff")
    r(f"s_cmp_eq_u32 {S(sT0)}, 16")
    r("s_cbranch_scc1 L_GO")
    r(f"s_mov_b32 {S(sSKIP)}, 1")
    r("L_GO:")
    r(f"s_lshl_b32 {S(sT0)}, {S(sSKIP)}, 16")
    r(f"s_or_b32 {S(sT0)}, {S(sT0)}, {S(sEXTRA)}")
    r(f"v_mov_b32 {V(vT + 1)}, {S(sT0)}")
    r(f"v_mov_b32 {V(vT)}, 0")
    r(f"ds_write_b32 {V(vT)}, {V(vT + 1)} offset:{STATS}")
    r("s_waitcnt lgkmcnt(0)")
    r("s_mov_b64 exec, -1")
    r("L_WAIT:")
    E(f"s_mul_i32 {S(sT0)}, {S(sGRP)}, {16 * PART_BYTES}")
    srd(SRD_G, sPTR + 24, sT0, 16 * PART_BYTES)
    E(f"s_mov_b32 {S(SRD_O)}, {S(sPTR + 20)}")
    E(f"s_and_b32 {S(SRD_O + 1)}, {S(sPTR + 21)}, 0xffff")
    E(f"s_mov_b32 {S(SRD_O + 2)}, {8 * 64 * 896 * 2}")
    E(f"s_mov_b32 {S(SRD_O + 3)}, 0x00020000")
    E(f"v_lshrrev_b32 {V(vT + 4)}, 5, {V(vL)}")
    E(f"s_lshl_b32 {S(sT0)}, {S(sW)}, 1")
    E(f"v_add_u32 {V(vT + 4)}, {S(sT0)}, {V(vT + 4)}")
    E(f"v_min_u32 {V(vT + 4)}, 6, {V(vT + 4)}")
    E(f"v_and_b32 {V(vT + 5)}, 31, {V(vL)}")
    E(f"s_mul_i32 {S(sT2)}, {S(sB)}, 114688")
    E(f"s_mul_i32 {S(sT3)}, {S(sBR)}, 896")
    E(f"s_add_u32 {S(sT2)}, {S(sT2)}, {S(sT3)}")
    E(f"s_mov_b32 {S(sT3)}, 28672")
    r("s_barrier")
    E(f"v_mov_b32 {V(vT)}, 0")
    r(f"ds_read_b32 {V(vT + 1)}, {V(vT)} offset:{STATS}")
    r("s_waitcnt lgkmcnt(0)")
    r(f"v_readfirstlane_b32 {S(sEXTRA)}, {V(vT + 1)}")
    r("s_nop 3")
    r(f"s_lshr_b32 {S(sSKIP)}, {S(sEXTRA)}, 16")
    r(f"s_and_b32 {S(sEXTRA)}, {S(sEXTRA)}, 0xffff")
    r(f"s_cmp_lg_u32 {S(sSKIP)}, 0")
    r("s_cbranch_scc1 L_DONE")
    r(f"s_mov_b32 {S(sCUR)}, {S(sH)}")
    stamp()
    r("L_SLICE:")
    h = Gen()
    e = h.emit
    hb, off, blk, l64, wq_, j_, ob = vT + 6, vT + 7, vT + 8, vT + 9, vT + 10, vT + 11, vT + 12
    e(f"s_mul_i32 {S(sT0)}, {S(sCUR)}, 7")
    e(f"v_add_u32 {V(hb)}, {S(sT0)}, {V(vT + 4)}")
    e(f"v_lshlrev_b32 {V(off)}, 9, {V(hb)}")
    e(f"v_lshl_add_u32 {V(off)}, {V(vT + 5)}, 4, {V(off)}")
    D = 64
    for hh in range(16):
        e(f"s_mov_b32 {S(sT1)}, {hh * PART_BYTES}")
        e(f"buffer_load_dwordx4 {V(D + hh * 4, 4)}, {V(off)}, {S(SRD_G, 4)}, {S(sT1)} offen sc1")
    e(f"v_lshrrev_b32 {V(blk)}, 1, {V(hb)}")
    e(f"v_and_b32 {V(l64)}, 1, {V(hb)}")
    e(f"v_lshl_add_u32 {V(l64)}, {V(l64)}, 5, {V(vT + 5)}")
    e(f"v_mul_u32_u24 {V(wq_)}, 4682, {V(blk)}")
    e(f"v_lshrrev_b32 {V(wq_)}, 16, {V(wq_)}")
    e(f"v_mul_u32_u24 {V(j_)}, 14, {V(wq_)}")
    e(f"v_sub_u32 {V(j_)}, {V(blk)}, {V(j_)}")
    e(f"v_mul_u32_u24 {V(ob)}, 224, {V(wq_)}")
    e(f"v_lshrrev_b32 {V(blk)}, 1, {V(j_)}")
    e(f"v_lshl_add_u32 {V(ob)}, {V(blk)}, 5, {V(ob)}")
    e(f"v_and_b32 {V(j_)}, 1, {V(j_)}")
    e(f"v_mul_u32_u24 {V(j_)}, 57344, {V(j_)}")
    e(f"v_add3_u32 {V(ob)}, {V(ob)}, {V(j_)}, {S(sT2)}")
    e(f"v_and_b32 {V(j_)}, 15, {V(l64)}")
    e(f"v_mul_u32_u24 {V(j_)}, 1792, {V(j_)}")
    e(f"v_lshrrev_b32 {V(l64)}, 4, {V(l64)}")
    e(f"v_lshl_add_u32 {V(j_)}, {V(l64)}, 3, {V(j_)}")
    e(f"v_add_u32 {V(ob)}, {V(ob)}, {V(j_)}")
    AC, TM = 128, 136
    for hh in range(16):
        for k in range(4):
            src = D + hh * 4 + k
            if hh == 0:
                e(f"v_lshlrev_b32 {V(AC + 2 * k)}, 16, {V(src)}")
                e(f"v_and_b32 {V(AC + 1 + 2 * k)}, 0xffff0000, {V(src)}")
            else:
                e(f"v_lshlrev_b32 {V(TM + (k % 2) * 2)}, 16, {V(src)}")
                e(f"v_and_b32 {V(TM + 1 + (k % 2) * 2)}, 0xffff0000, {V(src)}")
                e(f"v_pk_add_f32 {V(AC + 2 * k, 2)}, {V(AC + 2 * k, 2)}, {V(TM + (k % 2) * 2, 2)}")
    for k in range(4):
        e(f"v_cvt_pk_bf16_f32 {V(TM + k)}, {V(AC + 2 * k)}, {V(AC + 1 + 2 * k)}")
    e(f"buffer_store_dwordx2 {V(TM, 2)}, {V(ob)}, {S(SRD_O, 4)}, 0 offen")
    e(f"buffer_store_dwordx2 {V(TM + 2, 2)}, {V(ob)}, {S(SRD_O, 4)}, {S(sT3)} offen")
    for i in h.ins:
        g.ins.append(i)
    r(f"s_cmp_eq_u32 {S(sEXTRA)}, 0")
    r("s_cbranch_scc1 L_DONE")
    r(f"s_ff1_i32_b32 {S(sCUR)}, {S(sEXTRA)}")
    r(f"s_bitset0_b32 {S(sEXTRA)}, {S(sCUR)}")
    r("s_waitcnt vmcnt(0)")
    r("s_branch L_SLICE")
    r("L_DONE:")
    g.vm = [(set(), "tail")]


def k1():
    prologue_a()
    stamp()
    dma_x()
    for _ in range(4 * args.init):
        eng.step_dma(force=True)
    prologue_b()
    if args.wowarm == 2:
        E(f"v_lshlrev_b32 {V(vT + 15)}, 7, v0")
        E(f"buffer_load_dword {A(255)}, {V(vT + 15)}, {S(SRD_WO, 4)}, {S(sRO)} offen", tag="warm")
    g.wait_vm("X")
    g.raw("s_barrier")
    now[0] = max(now[0], 3000)
    stamp()
    def xb_reads(G):
        out = []
        bb = bbuf(G)
        for ks2 in range(2):
            ks = 2 * G + ks2
            for nt in range(2):
                off = X_BASE + ((ks >> 2) * 8 + 4 * nt) * 1024
                out.append(f"ds_read_b128 {A(bb + (ks2 * 2 + nt) * 4, 4)}, {V(vRBx + (ks & 3))} offset:{off}")
        return out
    for x in xb_reads(0):
        E(x)
    for G in range(14):
        u = ("wq", G)
        eng.pos = G
        eng.force(u)
        bb = bbuf(G)
        mf = []
        for ks in range(2):
            for mt in range(2):
                for nt in range(2):
                    acc = V(ACC + (mt * 2 + nt) * 16, 16)
                    c = "0" if (G == 0 and ks == 0) else acc
                    mf.append(f"{M32} {acc}, {eng.reg(u, (ks * 2 + mt) * 4, 4)}, {A(bb + (ks * 2 + nt) * 4, 4)}, {c}")
        eng.pos = G + 0.4
        if G + 1 < 14:
            pass
        mfma_step(mf, xb_reads(G + 1) if G + 1 < 14 else [])
        eng.release(u)
    eng.pos = 13.5
    stamp()
    def cvt_inplace():
        for mt in range(2):
            for nt in range(2):
                for tt in range(2):
                    b = ACC + (mt * 2 + nt) * 16 + 8 * tt
                    for k in range(4):
                        CV(f"v_cvt_pk_bf16_f32 {V(b + k)}, {V(b + 2 * k)}, {V(b + 2 * k + 1)}")
    cvt_inplace()
    barrier()
    for mt in range(2):
        for nt in range(2):
            for tt in range(2):
                b = ACC + (mt * 2 + nt) * 16 + 8 * tt
                E(f"ds_write_b128 {V(vQW)}, {V(b, 4)} offset:{X_BASE + (2 * mt + tt) * 2048 + nt * 1024}")
    eng.urgent = True
    for _ in range(4):
        eng.tick()
    eng.urgent = False
    barrier()
    stamp()
    def q_reads(cg):
        out = []
        for i in range(4):
            ks = cg * 4 + i
            for nt in range(2):
                out.append(f"ds_read_b128 {A(QREG + (ks * 2 + nt) * 4, 4)}, {V(vLin)} offset:{X_BASE + (ks * 2 + nt) * 1024}")
        return out
    def Sreg(T, nt, r):
        return ACC + (T * 2 + nt) * 16 + r
    vTM = [vT + k for k in range(8)]
    vTS = [vT + 8 + k for k in range(8)]
    def tile_exp(T):
        out = []
        for nt in range(2):
            vs = [Sreg(T, nt, r) for r in range(16)]
            m, sm_ = vTM[T * 2 + nt], vTS[T * 2 + nt]
            out.append(f"v_max3_f32 {V(m)}, {V(vs[0])}, {V(vs[1])}, {V(vs[2])}")
            out.append(f"v_max3_f32 {V(sm_)}, {V(vs[3])}, {V(vs[4])}, {V(vs[5])}")
            for k in range(6, 14, 4):
                out.append(f"v_max3_f32 {V(m)}, {V(m)}, {V(vs[k])}, {V(vs[k + 1])}")
                out.append(f"v_max3_f32 {V(sm_)}, {V(sm_)}, {V(vs[k + 2])}, {V(vs[k + 3])}")
            out.append(f"v_max3_f32 {V(m)}, {V(m)}, {V(vs[14])}, {V(vs[15])}")
            out.append(f"v_max_f32 {V(m)}, {V(m)}, {V(sm_)}")
            out.append(f"v_mul_f32 {V(m)}, {S(sC)}, {V(m)}")
        for nt in range(2):
            vs = [Sreg(T, nt, r) for r in range(16)]
            m, sm_ = vTM[T * 2 + nt], vTS[T * 2 + nt]
            for h in range(2):
                rs = vs[8 * h:8 * h + 8]
                for r in rs:
                    out.append(f"v_fma_f32 {V(r)}, {V(r)}, {S(sC)}, -{V(m)}")
                for r in rs:
                    out.append(f"v_exp_f32 {V(r)}, {V(r)}")
            out.append(f"v_add_f32 {V(sm_)}, {V(vs[0])}, {V(vs[1])}")
            for k in range(2, 16):
                out.append(f"v_add_f32 {V(sm_)}, {V(sm_)}, {V(vs[k])}")
        return out
    for x in q_reads(0):
        E(x)
    pending = []
    for i in range(16):
        u = ("k", i)
        eng.pos = 14 + i
        eng.force(u)
        T, cg = i // 4, i % 4
        mf = []
        for k4 in range(4):
            ks = cg * 4 + k4
            for nt in range(2):
                acc = V(ACC + (T * 2 + nt) * 16, 16)
                c = "0" if ks == 0 else acc
                mf.append(f"{M32} {acc}, {eng.reg(u, k4 * 4, 4)}, {A(QREG + (ks * 2 + nt) * 4, 4)}, {c}")
        eng.pos = 14 + i + 0.4
        if cg == 0 and T > 0:
            assert not pending
            E(mf.pop(0)); eng.tick(args.b32); E(mf.pop(0)); eng.tick(args.b32)
            pending = tile_exp(T - 1)
        mfma_step(mf, q_reads(cg + 1) if (T == 0 and cg < 3) else [], pending)
        if cg == 3:
            for x in pending:
                CV(x)
            pending = []
        eng.release(u)
    eng.pos = 29.6
    stamp()
    if args.wowarm == 1:
        E(f"v_lshlrev_b32 {V(vT + 15)}, 7, v0")
        E(f"buffer_load_dword {A(255)}, {V(vT + 15)}, {S(SRD_WO, 4)}, {S(sRO)} offen", tag="warm")
    lst = tile_exp(3)
    nmax = 2 * 9
    for x in lst[:nmax]:
        CV(x)
    mA, mB = vRBx, vRBx + 1
    for nt, d in ((0, mA), (1, mB)):
        E(f"v_max3_f32 {V(d)}, {V(vTM[nt])}, {V(vTM[2 + nt])}, {V(vTM[4 + nt])}")
        E(f"v_max_f32 {V(d)}, {V(d)}, {V(vTM[6 + nt])}")
    E(f"v_permlane32_swap_b32 {V(mA)}, {V(mB)}")
    E(f"v_max_f32 {V(mA)}, {V(mA)}, {V(mB)}")
    E(f"ds_write_b32 {V(vSTw)}, {V(mA)} offset:{STATS}")
    half = nmax + (len(lst) - nmax) // 2
    for x in lst[nmax:half]:
        CV(x)
    barrier()
    st0, st1 = vXD, vWD
    E(f"ds_read_b128 {V(vWD, 4)}, {V(vSTr)} offset:{STATS}")
    E(f"ds_read_b128 {V(vKD, 4)}, {V(vSTr)} offset:{STATS + 512}")
    for x in lst[half:]:
        CV(x)
    for b, d in ((vWD, mA), (vKD, mB)):
        E(f"v_max3_f32 {V(d)}, {V(b)}, {V(b + 1)}, {V(b + 2)}")
        E(f"v_max_f32 {V(d)}, {V(d)}, {V(b + 3)}")
    barrier()
    for T in range(4):
        for nt, d in ((0, mA), (1, mB)):
            E(f"v_sub_f32 {V(vTM[T * 2 + nt])}, {V(vTM[T * 2 + nt])}, {V(d)}")
    for k in range(8):
        E(f"v_exp_f32 {V(vTM[k])}, {V(vTM[k])}")
    sm = [vRBx + 2, vRBx + 3]
    for nt in range(2):
        E(f"v_mul_f32 {V(sm[nt])}, {V(vTS[nt])}, {V(vTM[nt])}")
        for T in range(1, 4):
            E(f"v_fmac_f32 {V(sm[nt])}, {V(vTS[T * 2 + nt])}, {V(vTM[T * 2 + nt])}")
    E(f"v_permlane32_swap_b32 {V(sm[0])}, {V(sm[1])}")
    E(f"v_add_f32 {V(sm[0])}, {V(sm[0])}, {V(sm[1])}")
    for T in range(4):
        for nt in range(2):
            f = vTM[T * 2 + nt]
            fp = f & ~1
            sel = f & 1
            for tt in range(2):
                rs = [Sreg(T, nt, 8 * tt + e) for e in range(8)]
                for k in range(4):
                    CV(f"v_pk_mul_f32 {V(rs[2 * k], 2)}, {V(rs[2 * k], 2)}, {V(fp, 2)} op_sel:[0,{sel}] op_sel_hi:[1,{sel}]")
                for k in range(4):
                    CV(f"v_cvt_pk_bf16_f32 {V(rs[k])}, {V(rs[2 * k])}, {V(rs[2 * k + 1])}")
                E(f"ds_write_b128 {V(vPW)}, {V(rs[0], 4)} offset:{X_BASE + (2 * T + tt) * 2048 + nt * 1024}")
    eng.pos = 29.9
    barrier()
    stamp()
    def p_reads(i):
        out = []
        bb = bbuf(i)
        for ks2 in range(2):
            for nt in range(2):
                off = X_BASE + ((2 * i + ks2) * 2 + nt) * 1024
                out.append(f"ds_read_b128 {A(bb + (ks2 * 2 + nt) * 4, 4)}, {V(vLin)} offset:{off}")
        return out
    for x in p_reads(0):
        E(x)
    for i in range(16):
        u = ("v", i)
        eng.pos = 30 + i
        eng.force(u)
        bb = bbuf(i)
        mf = []
        for ks in range(2):
            for mt in range(2):
                for nt in range(2):
                    acc = V(ACC + (mt * 2 + nt) * 16, 16)
                    c = "0" if (i == 0 and ks == 0) else acc
                    mf.append(f"{M32} {acc}, {eng.reg(u, (ks * 2 + mt) * 4, 4)}, {A(bb + (ks * 2 + nt) * 4, 4)}, {c}")
        eng.pos = 30 + i + 0.4
        mfma_step(mf, p_reads(i + 1) if i + 1 < 16 else [])
        eng.release(u)
    eng.pos = 45.6
    stamp()
    eng.urgent = True
    cvt_inplace()
    eng.urgent = False
    barrier()
    E(f"ds_write_b32 {V(vSTw)}, {V(sm[0])} offset:{SUMS}")
    for mt in range(2):
        for nt in range(2):
            for tt in range(2):
                b = ACC + (mt * 2 + nt) * 16 + 8 * tt
                E(f"ds_write_b128 {V(vOW if mt == 0 else vOW2)}, {V(b, 4)} offset:{X_BASE + nt * 2048 + tt * 512}")
    eng.urgent = True
    for _ in range(4):
        eng.tick()
    eng.urgent = False
    barrier()
    stamp()
    def o_reads(s):
        return [f"ds_read_b128 {A(bbuf(s) + u * 4, 4)}, {V(vLin)} offset:{X_BASE + (s * 4 + u) * 1024}" for u in range(4)]
    for x in o_reads(0):
        E(x)
    for u4 in range(4):
        E(f"ds_read_b128 {V(vT + u4 * 4, 4)}, {V(vSMr)} offset:{SUMS + u4 * 256}")
    fl = (" " + args.stsc.replace("_", " ")) if args.stsc else ""
    def store_tile(m, up):
        out = []
        a0 = ACC + (m * 4 + 2 * up) * 4
        for h in range(2):
            rinv = V(vT + (2 * up + h) * 4, 2)
            for k in range(0, 4, 2):
                out.append(f"v_pk_mul_f32 {V(a0 + 4 * h + k, 2)}, {V(a0 + 4 * h + k, 2)}, {rinv} op_sel:[0,0] op_sel_hi:[1,0]")
        for k in range(4):
            out.append(f"v_cvt_pk_bf16_f32 {V(a0 + k)}, {V(a0 + 2 * k)}, {V(a0 + 2 * k + 1)}")
        j = m * 2 + up
        out.append(f"buffer_store_dwordx4 {V(a0, 4)}, {V(vOut)}, {S(SRD_P, 4)}, {S(sST + j // 4)} offen offset:{(j % 4) * 1024}{fl}")
        return out
    for s in range(8):
        u = ("wo", s)
        eng.pos = 46 + s
        eng.force(u)
        bb = bbuf(s)
        mf = []
        for m in range(7):
            for u4 in range(4):
                acc = V(ACC + (m * 4 + u4) * 4, 4)
                c = "0" if s == 0 else acc
                mf.append(f"{M16} {acc}, {eng.reg(u, m * 4, 4)}, {A(bb + u4 * 4, 4)}, {c}")
        eng.pos = 46 + s + 0.4
        if s < 7:
            extra = o_reads(s + 1)
            if s == 0:
                for u4 in range(4):
                    b = vT + u4 * 4
                    extra += [f"v_add_f32 {V(b)}, {V(b)}, {V(b + 1)}", f"v_add_f32 {V(b + 2)}, {V(b + 2)}, {V(b + 3)}",
                              f"v_add_f32 {V(b)}, {V(b)}, {V(b + 2)}", f"v_rcp_f32 {V(b)}, {V(b)}"]
            for k, m in enumerate(mf):
                E(m)
                eng.urgent = k >= args.urg16
                if k >= 2 and extra and k % 2 == 0:
                    E(extra.pop(0))
                    eng.tick(args.b16 - 1)
                else:
                    eng.tick(args.b16)
            eng.urgent = False
            for x in extra:
                E(x)
        else:
            pend = []
            for k, mm in enumerate(mf):
                E(mm)
                m, u4 = k // 4, k % 4
                if u4 == 0 and m >= 2:
                    pend += store_tile(m - 2, 0) + store_tile(m - 2, 1)
                for _ in range(args.stper):
                    if pend:
                        E(pend.pop(0))
            for x in pend:
                E(x)
            stamp()
            for m in (5, 6):
                for up in range(2):
                    for x in store_tile(m, up):
                        E(x)
        eng.release(u)
    if args.fused:
        if args.stamps:
            g.wait_vm()
            stamp()
        fused_tail()
    if args.stamps:
        g.wait_vm()
        stamp()
        n = stamp_n[0]
        E(f"v_mov_b32 {V(vT)}, 0")
        E(f"v_accvgpr_read_b32 {V(vT + 3)}, {A(STAMP_A)}")
        for k in range(n):
            E(f"v_accvgpr_read_b32 {V(vT + 1)}, {A(STAMP_A + k)}")
            E(f"v_sub_u32 {V(vT + 1)}, {V(vT + 1)}, {V(vT + 3)}")
            E(f"v_cmp_eq_u32 vcc, {k}, {V(vL)}")
            E(f"v_cndmask_b32 {V(vT)}, {V(vT)}, {V(vT + 1)}, vcc")
        E(f"v_lshlrev_b32 {V(vT + 2)}, 2, v0")
        E(f"buffer_store_dword {V(vT)}, {V(vT + 2)}, {S(SRD_D, 4)}, 0 offen")
    if args.dbgtime:
        g.wait_vm()
        g.raw("s_memtime s[88:89]")
        g.raw("s_memrealtime s[90:91]")
        g.raw("s_waitcnt lgkmcnt(0)")
        E("s_mul_hi_u32 s80, s2, 50529028")
        E("s_mul_i32 s81, s80, 85")
        E("s_cmp_eq_u32 s81, s2")
        g.raw("s_cbranch_scc0 K1_END")
        E("s_sub_u32 s88, s88, s96")
        E(f"v_mov_b32 {V(vT)}, s88")
        E(f"v_mov_b32 {V(vT + 1)}, s98")
        E(f"v_mov_b32 {V(vT + 2)}, s90")
        E(f"v_mov_b32 {V(vT + 3)}, s2")
        E("s_lshl_b32 s80, s80, 4")
        E(f"s_add_u32 s80, s80, {100 << 20}")
        E(f"v_mov_b32 {V(vT + 4)}, s80")
        E("v_cmp_eq_u32 vcc, 0, v0")
        g.raw("s_nop 4")
        g.raw("s_and_saveexec_b64 s[82:83], vcc")
        g.raw("s_cbranch_execz K1_END")
        E(f"global_store_dwordx4 {V(vT + 4)}, {V(vT, 4)}, {S(sPTR + 24, 2)}")
    g.raw("K1_END:")
    g.raw("s_endpgm")


def k2():
    h = Gen()
    e = h.emit
    h.raw("s_cmp_ge_u32 s2, 896")
    h.raw("s_cbranch_scc1 K2_END")
    h.raw("s_load_dwordx2 s[4:5], s[0:1], 80")
    h.raw("s_load_dwordx2 s[6:7], s[0:1], 96")
    if args.dbgtime:
        h.raw("s_load_dwordx2 s[40:41], s[0:1], 88")
        h.raw("s_memrealtime s[42:43]")
    e("s_mul_hi_u32 s3, s2, 0x4924925")
    e("s_mul_i32 s8, s3, 56")
    e("s_sub_u32 s8, s2, s8")
    e("v_lshlrev_b32 v2, 4, v0")
    e("s_lshl_b32 s9, s8, 10")
    e("v_add_u32 v2, s9, v2")
    e(f"s_mul_i32 s12, s3, {16 * PART_BYTES}")
    for hh in range(16):
        e(f"s_mov_b32 s{24 + hh}, {hh * PART_BYTES}")
    e(f"s_mov_b32 s18, {16 * PART_BYTES}")
    e("s_mov_b32 s19, 0x00020000")
    h.raw("s_waitcnt lgkmcnt(0)")
    e("s_add_u32 s16, s6, s12")
    e("s_addc_u32 s17, s7, 0")
    e("s_and_b32 s17, s17, 0xffff")
    for hh in range(16):
        e(f"buffer_load_dwordx4 {V(16 + hh * 4, 4)}, v2, s[16:19], s{24 + hh} offen")
    e("s_mul_i32 s9, s8, 4682")
    e("s_lshr_b32 s9, s9, 16")
    e("s_mul_i32 s13, s9, 14")
    e("s_sub_u32 s13, s8, s13")
    e("s_lshr_b32 s14, s13, 1")
    e("s_and_b32 s13, s13, 1")
    e("s_and_b32 s10, s3, 7")
    e("s_lshr_b32 s11, s3, 3")
    e("s_mul_i32 s10, s10, 114688")
    e("s_mul_i32 s11, s11, 896")
    e("s_add_u32 s10, s10, s11")
    e("s_mul_i32 s11, s13, 57344")
    e("s_add_u32 s10, s10, s11")
    e("s_mul_i32 s11, s9, 224")
    e("s_add_u32 s10, s10, s11")
    e("s_lshl_b32 s11, s14, 5")
    e("s_add_u32 s10, s10, s11")
    e("v_and_b32 v3, 15, v0")
    e("v_lshrrev_b32 v4, 4, v0")
    e("v_mul_u32_u24 v3, 1792, v3")
    e("v_lshl_add_u32 v3, v4, 3, v3")
    e("v_add_u32 v3, s10, v3")
    e("s_mov_b32 s15, 28672")
    e("s_mov_b32 s20, s4")
    e("s_and_b32 s21, s5, 0xffff")
    e(f"s_mov_b32 s22, {8 * 64 * 896 * 2}")
    e("s_mov_b32 s23, 0x00020000")
    for hh in range(16):
        for k in range(4):
            src = 16 + hh * 4 + k
            if hh == 0:
                e(f"v_lshlrev_b32 {V(8 + 2 * k)}, 16, {V(src)}")
                e(f"v_and_b32 {V(9 + 2 * k)}, 0xffff0000, {V(src)}")
            else:
                e(f"v_lshlrev_b32 {V(4 + (k % 2) * 2)}, 16, {V(src)}")
                e(f"v_and_b32 {V(5 + (k % 2) * 2)}, 0xffff0000, {V(src)}")
                e(f"v_pk_add_f32 {V(8 + 2 * k, 2)}, {V(8 + 2 * k, 2)}, {V(4 + (k % 2) * 2, 2)}")
    for k in range(4):
        e(f"v_cvt_pk_bf16_f32 {V(4 + k)}, {V(8 + 2 * k)}, {V(9 + 2 * k)}")
    nv = 80
    e("buffer_store_dwordx2 v[4:5], v3, s[20:23], 0 offen")
    e("buffer_store_dwordx2 v[6:7], v3, s[20:23], s15 offen")
    if args.dbgtime:
        h.wait_vm()
        h.raw("s_memrealtime s[44:45]")
        h.raw("s_waitcnt lgkmcnt(0)")
        e("s_cmp_eq_u32 s2, 895")
        h.raw("s_cbranch_scc0 K2_END")
        e("v_lshlrev_b32 v1, 2, v0")
        e(f"v_add_u32 v2, {100 << 20}, v1")
        e("v_cmp_gt_u32 vcc, 16, v0")
        h.raw("s_nop 4")
        h.raw("s_and_saveexec_b64 s[46:47], vcc")
        h.raw("s_cbranch_execz K2_END")
        e("global_load_dword v3, v2, s[6:7]")
        e("v_mov_b32 v4, s42")
        e("v_cmp_eq_u32 vcc, 3, v0")
        e("v_cndmask_b32 v3, v3, v4, vcc")
        e("v_mov_b32 v4, s44")
        e("v_cmp_eq_u32 vcc, 7, v0")
        e("v_cndmask_b32 v3, v3, v4, vcc")
        e("global_store_dword v1, v3, s[40:41]")
    h.raw("K2_END:")
    h.raw("s_endpgm")
    return h.finish(), nv


k1()
body1 = g.finish()
nins = sum(1 for l in body1.splitlines() if l.strip() and not l.strip().startswith(';') and not l.strip().endswith(':'))
body2, nv2 = k2()

desc = lambda name, nv, acc, ns: f""".p2align 6
.amdhsa_kernel {name}
  .amdhsa_next_free_vgpr {nv}
  .amdhsa_next_free_sgpr {ns}
  .amdhsa_accum_offset {acc}
  .amdhsa_group_segment_fixed_size 0
  .amdhsa_kernarg_size 104
  .amdhsa_user_sgpr_count 2
  .amdhsa_user_sgpr_kernarg_segment_ptr 1
  .amdhsa_system_sgpr_workgroup_id_x 1
.end_amdhsa_kernel
"""
K1 = NAME + "_kernel"
K2 = "reduce_partials_kernel"
txt = HEADER
if args.fused:
    txt += f"; @launch grid=(256,1,1) block=(256,1,1) lds={LDS_BYTES}\n"
else:
    txt += f"; @launch kernel={K1} grid=(256,1,1) block=(256,1,1) lds={LDS_BYTES}\n"
    if not args.nok2:
        txt += f"; @launch kernel={K2} grid=(896,1,1) block=(64,1,1) lds=0\n"
k2txt = "" if args.fused else f""".globl {K2}
.p2align 8
.type {K2},@function
{K2}:
{body2}"""
k2desc = "" if args.fused else desc(K2, nv2, (nv2 + 3) // 4 * 4, 48)
txt += f""".amdgcn_target "amdgcn-amd-amdhsa--gfx950"
.text
.globl {K1}
.p2align 8
.type {K1},@function
{K1}:
{body1}
{k2txt}
CODE_END:
.fill 64, 4, 0xbf800000
.section .rodata,"a"
{desc(K1, 512, 256, 102)}
{k2desc}
"""
open(args.o, "w").write(txt)
print(f"wrote {args.o}: k1 {nins} instrs, est {now[0]:.0f} cycles")
```
